```python
import torch

def _softmax(x, axis=-1):
    return torch.softmax(x, dim=axis)
def _gelu(x):
    return torch.nn.functional.gelu(x, approximate="tanh")
def _silu(x):
    return torch.nn.functional.silu(x)
def _sigmoid(x):
    return torch.sigmoid(x)
def _layernorm(x, axis=-1, eps=1e-5):
    m = x.mean(dim=axis, keepdim=True)
    v = x.var(dim=axis, keepdim=True, unbiased=False)
    return (x - m) / torch.sqrt(v + eps)
def _scatter_add(tgt, idx, src, axis=0):
    return tgt.clone().index_add_(axis, idx, src)
def _segment_sum(src, seg, n):
    out = torch.zeros((n,) + src.shape[1:], dtype=src.dtype)
    return out.index_add_(0, seg, src)
def _pad(x, pw):
    flat = tuple(v for pair in reversed(pw) for v in pair)
    return torch.nn.functional.pad(x, flat)

kernel_name = 'interleave_layers__ssm_conv_s4d__dense_activation_relu__prompt'

def setup_inputs():

    _w = (lambda a: (lambda t: t.to(torch.bfloat16) if t.is_floating_point() else t)(torch.as_tensor(a)))
    def _A_setup():
        Bsz, L, D, N = 1, 2048, 512, 128
        return {
            "u": _w((lambda *s: torch.randn(*s, dtype=torch.bfloat16) * 0.05)(Bsz, L, D)),
            "log_A_real": _w((lambda *s: torch.randn(*s, dtype=torch.bfloat16) * 3.2)(D, N) * 0.5),
            "A_imag": _w((lambda *s: torch.randn(*s, dtype=torch.bfloat16) * 0.2)(D, N) * 3.14),
            "C_real": _w((lambda *s: torch.randn(*s, dtype=torch.bfloat16) * 0.2)(D, N) / N ** 0.5),
            "C_imag": _w((lambda *s: torch.randn(*s, dtype=torch.bfloat16) * 0.2)(D, N) / N ** 0.5),
            "log_dt": _w((lambda *s: torch.randn(*s, dtype=torch.bfloat16) * 0.2)(D) * 0.5 - 4.0),
            "D_skip": _w((lambda *s: torch.randn(*s, dtype=torch.bfloat16) * 0.2)(D)),
        }
    _A_in = _A_setup()

    def _B_setup():
        B, S, D, Dff = 1, 2048, 512, 1376
        return {
            "x": _w((lambda *s: torch.randn(*s, dtype=torch.bfloat16) * 0.05)(B, S, D)),
            "w1": _w((lambda *s: torch.randn(*s, dtype=torch.bfloat16) * 0.05)(D, Dff)),
            "w2": _w((lambda *s: torch.randn(*s, dtype=torch.bfloat16) * 0.05)(Dff, D)),
        }
    _B_in = _B_setup()

    return {
        "A_u": _A_in["u"],
        "A_log_A_real": _A_in["log_A_real"],
        "A_A_imag": _A_in["A_imag"],
        "A_C_real": _A_in["C_real"],
        "A_C_imag": _A_in["C_imag"],
        "A_log_dt": _A_in["log_dt"],
        "A_D_skip": _A_in["D_skip"],
        "B_x": _B_in["x"],
        "B_w1": _B_in["w1"],
        "B_w2": _B_in["w2"],
    }

def reference(A_u, A_log_A_real, A_A_imag, A_C_real, A_C_imag, A_log_dt, A_D_skip, B_x, B_w1, B_w2):
    def _A_ref(u, log_A_real, A_imag, C_real, C_imag, log_dt, D_skip):
        L = u.shape[1]
        dt = torch.exp(log_dt)
        A = -torch.exp(log_A_real) + 1j * A_imag
        C = (C_real + 1j * C_imag) * dt[:, None]
        pos = (lambda x, dt: x.to(dt))(torch.arange(L), log_dt.dtype)
        P = torch.exp((A * dt[:, None])[:, :, None] * pos[None, None, :])
        K = 2.0 * torch.einsum("dn,dnl->dl", C, P).real
        L2 = 2 * L
        u_t = (lambda x, *d: x.permute(*d))(u, 0, 2, 1)
        Kf = (lambda x, *a, **k: torch.fft.rfft(x.float(), *a, **k))(K, L2)
        Uf = (lambda x, *a, **k: torch.fft.rfft(x.float(), *a, **k))(u_t, L2)
        y = (lambda x, *a, **k: torch.fft.irfft(x, *a, **k).to(torch.bfloat16))(Uf * Kf[None, :, :], L2)[:, :, :L]
        y = (lambda x, *d: x.permute(*d))(y, 0, 2, 1)
        return y + u * D_skip[None, None, :]

    def _B_ref(x, w1, w2):
        h = torch.einsum("bsd,df->bsf", x, w1)
        zero = torch.zeros_like(h)
        h = torch.maximum(h, zero)
        return torch.einsum("bsf,fd->bsd", h, w2)

    x = A_u
    x = x + _A_ref(_layernorm(x, axis=-1), A_log_A_real, A_A_imag, A_C_real, A_C_imag, A_log_dt, A_D_skip)
    x = x + _B_ref(_layernorm(x, axis=-1), B_w1, B_w2)
    x = x + _A_ref(_layernorm(x, axis=-1), A_log_A_real, A_A_imag, A_C_real, A_C_imag, A_log_dt, A_D_skip)
    x = x + _B_ref(_layernorm(x, axis=-1), B_w1, B_w2)
    return x
```

```python
import re
REG=re.compile(r'^-?\|?(?:abs\()?([vas])(?:(\d+)|\[(\d+):(\d+)\])\)?\|?$')
TRANS=('v_exp_f32','v_log_f32','v_rcp_f32','v_rsq_f32','v_sqrt_f32','v_sin_f32','v_cos_f32')
def regs_of(op):
    op=op.strip()
    if op in('vcc',): return {'vcc'}
    if op in('exec',): return {'exec'}
    if op=='m0': return {'m0'}
    m=REG.match(op)
    if not m: return set()
    k=m.group(1)
    if m.group(2) is not None: return {k+m.group(2)}
    return {k+str(i) for i in range(int(m.group(3)),int(m.group(4))+1)}
class I:
    __slots__=('text','mn','ops','rd','wr','kind','passes','mods','A','B','C','wide','tag')
    def __init__(s,text,tag=None):
        s.text=text; s.tag=tag
        t=text.split(';')[0].strip()
        s.rd=set(); s.wr=set(); s.kind='other'; s.passes=0; s.A=s.B=s.C=set(); s.wide=set()
        if t.endswith(':') or t.startswith('.') or not t:
            s.mn=t; s.ops=[]; s.mods=''; s.kind='label' if t.endswith(':') else 'dir'; return
        p=t.split(None,1); s.mn=mn=p[0]; rest=p[1] if len(p)>1 else ''
        ops=[];cur='';d=0
        for ch in rest:
            if ch in'[(': d+=1
            if ch in'])': d-=1
            if ch==',' and d==0: ops.append(cur.strip());cur=''
            else: cur+=ch
        if cur.strip(): ops.append(cur.strip())
        mods=''
        if ops:
            l=ops[-1].split(None,1)
            if len(l)>1: ops[-1]=l[0]; mods=l[1]
        s.ops=ops; s.mods=mods
        R=[regs_of(o) for o in ops]
        U=lambda xs:set().union(*xs) if xs else set()
        if mn.startswith('v_mfma'):
            s.kind='mfma'; s.wr=R[0]; s.A=R[1]; s.B=R[2]; s.C=R[3]; s.rd=U(R[1:])
            s.passes=8 if '32x32' in mn else 4
        elif mn.startswith('v_'):
            s.kind='valu'; s.wr=R[0]; s.rd=U(R[1:])
            if 'permlane' in mn and 'swap' in mn: s.wr=U(R[:2]); s.rd=U(R[:2])
            if mn.startswith(('v_fmac','v_pk_fmac','v_dot2c','v_writelane')) or '_dpp' in mn or 'op_sel:[0,0,1]' in mods or '_sdwa' in mn: s.rd=s.rd|R[0]
            if mn.startswith(('v_add_co','v_sub_co','v_addc_co')): s.wr=U(R[:2]); s.rd=U(R[2:])
        elif mn.startswith(('buffer_load','global_load')):
            s.kind='vmem'
            if ' lds' in ' '+mods or 'load_lds' in mn: s.rd=U(R)|{'m0'}
            else:
                s.wr=R[0]; s.rd=U(R[1:])
                if 'd16' in mn: s.rd=s.rd|R[0]
        elif mn.startswith(('buffer_store','global_store','buffer_atomic','global_atomic')):
            s.kind='vmem'; s.rd=U(R)
            if 'x4' in mn or 'x3' in mn: s.wide=R[0] if mn.startswith('buffer') else R[1]
            if 'atomic' in mn and 'sc0' in mods: s.wr=R[0]
        elif mn.startswith('ds_'):
            s.kind='lds'
            if mn.startswith(('ds_read','ds_bpermute','ds_permute','ds_swizzle')):
                s.wr=R[0]; s.rd=U(R[1:])
                if 'd16' in mn: s.rd=s.rd|R[0]
            else: s.rd=U(R)
        elif mn.startswith(('s_load','s_memtime','s_memrealtime','s_buffer_load')):
            s.kind='smem'; s.wr=R[0]; s.rd=U(R[1:])
        elif mn.startswith('s_'):
            s.kind='salu'
            if mn.startswith(('s_cbranch','s_branch')):
                s.kind='branch'
                if 'vcc' in mn: s.rd={'vcc'}
            elif mn.startswith(('s_cmp','s_bitcmp','s_waitcnt','s_nop','s_barrier','s_endpgm','s_setprio','s_sleep')): s.rd=U(R)
            else:
                s.wr=R[0]; s.rd=U(R[1:])
                if 'saveexec' in mn: s.wr=s.wr|{'exec'}
                if mn.startswith(('s_addk','s_mulk')): s.rd=s.rd|R[0]
    def states(s):
        if s.kind in('label','dir'): return 0
        if s.mn=='s_nop': return int(s.ops[0])+1
        return 1
def isv(r): return r[0] in'va' and r!='vcc'
def iss(r): return r[0]=='s' or r=='vcc'
def need_states(p,c):
    n=0
    if p.kind=='valu':
        vw={r for r in p.wr if isv(r)}; sw={r for r in p.wr if iss(r)}
        if vw&c.rd:
            if c.kind=='mfma': n=max(n,2)
            if c.kind=='valu':
                if '_dpp' in c.mn or 'permlane' in c.mn: n=max(n,2)
                if c.mn.startswith(('v_readlane','v_readfirstlane')): n=max(n,1)
                if p.mn.startswith(TRANS): n=max(n,1)
                if '_sdwa' in p.mn or 'op_sel' in p.mods and not p.mn.startswith('v_pk'): n=max(n,1)
        if sw&c.rd:
            if c.kind=='vmem': n=max(n,5)
            if c.kind=='valu': n=max(n,4 if c.mn.startswith(('v_readlane','v_writelane')) else 2)
            if c.kind in('salu','smem','branch'): n=max(n,1)
    elif p.kind=='mfma':
        big=p.passes==8
        if c.kind=='mfma':
            if p.wr&(c.A|c.B): n=max(n,12 if big else 8)
            if p.wr&c.C and not(p.wr==c.C and p.passes==c.passes): n=max(n,10 if big else 6)
            if p.wr&c.wr and not(p.wr==c.wr and p.wr==c.C): n=max(n,10 if big else 6)
        elif c.kind in('valu','vmem','lds'):
            if p.wr&(c.rd|c.wr): n=max(n,12 if big else 8)
            if p.C&c.wr: n=max(n,7 if big else 3)
    elif p.kind=='vmem':
        if p.wide&c.wr: n=max(n,2)
    elif p.kind=='salu':
        if 'm0' in p.wr and 'm0' in c.rd and c.kind in('vmem','lds'): n=max(n,1)
    if p.kind in('vmem','lds') and c.kind=='valu' and '_dpp' in c.mn: pass
    return n
WC=re.compile(r'(vmcnt|lgkmcnt)\((\d+)\)')
def finalize(ins):
    out=[]; vm=[]; lg=[]
    def emit(i):
        need=0; dist=0
        for p in reversed(out):
            if dist>=12: break
            n=need_states(p,i)
            if n-dist>need: need=n-dist
            dist+=p.states()
        while need>0:
            k=min(need,16); out.append(I('s_nop %d'%(k-1))); need-=k
        out.append(i)
    for i in ins:
        if i.kind=='dir' and i.text.startswith('.!reset'):
            vm=[];lg=[]; continue
        if i.kind in('label','dir'): out.append(i); continue
        if i.mn=='s_waitcnt':
            for k,n in WC.findall(i.text):
                n=int(n)
                if k=='vmcnt': vm=vm[len(vm)-n:] if n<len(vm) and n>0 else ([] if n==0 else vm)
                else: lg=lg[len(lg)-n:] if n<len(lg) and n>0 else ([] if n==0 else lg)
            emit(i); continue
        touch=i.rd|i.wr
        wv=wl=None
        for k,(p) in enumerate(vm):
            if p.wr&touch and not(i.kind=='vmem' and not(p.wr&i.rd) and False): wv=len(vm)-1-k
        anysm=any(p.kind=='smem' for p in lg)
        for k,p in enumerate(lg):
            if p.wr&touch:
                if i.kind=='lds' and p.kind=='lds' and not(p.wr&(i.rd-(i.wr if 'd16' in i.mn else set()))): continue
                wl=0 if anysm else len(lg)-1-k
        if wv is not None or wl is not None:
            parts=[]
            if wv is not None:
                wv=min(wv,63); parts.append('vmcnt(%d)'%wv); vm=vm[len(vm)-wv:] if wv else []
            if wl is not None:
                wl=min(wl,15); parts.append('lgkmcnt(%d)'%wl); lg=lg[len(lg)-wl:] if wl else []
            emit(I('s_waitcnt '+' '.join(parts)))
        emit(i)
        if i.kind=='vmem': vm.append(i)
        elif i.kind in('lds','smem'): lg.append(i)
    return out
class P(list):
    def __call__(s,text,tag=None):
        for l in text.strip().split('\n'):
            l=l.strip()
            if l: s.append(I(l,tag))
        return s
def v(a,n=1): return 'v%d'%a if n==1 else 'v[%d:%d]'%(a,a+n-1)
def a(x,n=1): return 'a%d'%x if n==1 else 'a[%d:%d]'%(x,x+n-1)
def s(x,n=1): return 's%d'%x if n==1 else 's[%d:%d]'%(x,x+n-1)
def interleave(main,side,start=0,per=1,every=1):
    out=P(); side=list(side); k=0; m=0
    for i in main:
        out.append(i)
        if i.kind=='mfma':
            m+=1
            if m>start and (m-start)%every==0:
                for _ in range(per):
                    if k<len(side): out.append(side[k]); k+=1
    out.extend(side[k:])
    return out
```

```python
import sys
from asmlib import *
NAME='interleave_layers__ssm_conv_s4d__dense_activation_relu__prompt'
STAMP=('stamp' in sys.argv)
W1F=0; W2F=0x180000; ST0=0x2E0000; CNT=0x300000; ST2=0x320000
X1=[0x400000,0x600000]; X2=0x800000; H=[0xA00000,0x1000000]; TS=0x1600000; WSN=0x1700000
OOB=0x7ffffff0
KC=0; XT=66560; U=132096; BASE=141312; SQ=157696; MN=SQ+1024; DUM=MN+256; LDSN=163840
TT=BASE
WST=XT
sX,sWS,sOUT,sW,sDBG=8,12,16,20,28
sWV,sRB,sCB,sCP=3,4,5,6
sM1,sM2,sM3=60,62,64
sD0,sD1=66,67
sTS=68; sHI=70; sPL=71; sPH=72; sEPS=73; sSPIN=74
sT=76
vTID,vLANE,vSW,vT16,vL16,vL8=0,1,2,3,4,5
vCS=132; vRES=124; vR=123
def W1(ks,t): return a(ks*12+t*4,4)
def W2(ks,t):
    f=ks*4+t
    return a(192+f*4,4) if f<16 else v(144+(f-16)*4,4)
p=P(); tail=P(); nst=[0]
def stamp(name):
    if not STAMP: return
    k=nst[0]; nst[0]+=1
    p(f"""s_memrealtime s[{sT+16}:{sT+17}]
    s_waitcnt lgkmcnt(0)
    v_mov_b32 v15, s{sT+16}
    v_mov_b32 v14, 0
    s_add_u32 s{sT+16}, s{sTS}, {k*4}
    buffer_store_dword v15, v14, s[{sWS}:{sWS+3}], s{sT+16} offen ; stamp {name}""")
    print('stamp',k,name,file=sys.stderr)
def barrier():
    p("s_waitcnt lgkmcnt(0)\ns_barrier")
def srd(d,lo,n):
    p(f"s_mov_b32 s{d}, s{lo}\ns_and_b32 s{d+1}, s{lo+1}, 0xffff\ns_mov_b32 s{d+2}, {hex(n)}\ns_mov_b32 s{d+3}, 0x20000")
lab=[0]
def newlab(n): lab[0]+=1; return f"L{n}{lab[0]}"
def arrive(k):
    p("s_waitcnt vmcnt(0) lgkmcnt(0)\ns_barrier")
    L=newlab('arr')
    p(f"s_cmp_lg_u32 s{sWV}, 0\ns_cbranch_scc1 {L}")
    if k==0:
        p(f"""s_lshr_b32 s{sT}, s2, 3
        s_and_b32 s{sT}, s{sT}, 3
        s_lshl_b32 s{sT}, s{sT}, 6
        v_mov_b32 v14, 1
        v_lshlrev_b32 v15, 12, v{vLANE}
        buffer_atomic_add v14, v15, s[{sDBG}:{sDBG+3}], s{sT} offen sc1""")
    else:
        p(f"""s_lshr_b32 s{sT}, s2, 3
        s_and_b32 s{sT}, s{sT}, 15
        s_lshl_b32 s{sT}, s{sT}, 7
        s_add_u32 s{sT}, s{sT}, {CNT+(k-1)*16384}
        v_mov_b32 v14, 1
        v_lshlrev_b32 v15, 11, v{vLANE}
        v_mov_b32 v13, {OOB}
        v_cmp_gt_u32 vcc, 8, v{vLANE}
        v_cndmask_b32 v15, v13, v15, vcc
        buffer_atomic_add v14, v15, s[{sWS}:{sWS+3}], s{sT} offen sc1""")
    p(f"s_waitcnt vmcnt(0)\n{L}:")
def waitbar(k):
    L=newlab('wb'); L2=newlab('wbl')
    p(f"s_waitcnt vmcnt(0)\ns_cmp_lg_u32 s{sWV}, 0\ns_cbranch_scc1 {L}")
    if k==0:
        p(f"v_and_b32 v15, 3, v{vLANE}\nv_lshlrev_b32 v15, 6, v15\ns_mov_b32 s{sT}, 0"); sr=sDBG; tgt=64
    else:
        p(f"""v_and_b32 v15, 15, v{vLANE}
        v_lshlrev_b32 v15, 7, v15
        s_and_b32 s{sT}, s2, 7
        s_lshl_b32 s{sT}, s{sT}, 11
        s_add_u32 s{sT}, s{sT}, {CNT+(k-1)*16384}"""); sr=sWS; tgt=16
    p(f"""{L2}:
    buffer_load_dword v14, v15, s[{sr}:{sr+3}], s{sT} offen sc1
    s_sub_u32 s{sSPIN}, s{sSPIN}, 1
    s_cbranch_scc1 Lend
    s_waitcnt vmcnt(0)
    v_cmp_gt_u32 vcc, {tgt}, v14
    s_cbranch_vccnz {L2}
    {L}:
    s_barrier""")
def bfround(d,sx):
    p(f"v_cvt_pk_bf16_f32 v{d}, v{sx}, v{sx}\nv_and_b32 v{d}, s{sHI}, v{d}")
def std_from_var(d,var):
    p(f"v_max_f32 v{var}, 0, v{var}"); bfround(d,var); p(f"v_add_f32 v{d}, s{sEPS}, v{d}"); bfround(d,d); p(f"v_sqrt_f32 v{d}, v{d}"); bfround(d,d)
def red16(x):
    p(f"""v_add_f32_dpp v{x}, v{x}, v{x} row_ror:8 row_mask:0xf bank_mask:0xf
    v_add_f32_dpp v{x}, v{x}, v{x} row_half_mirror row_mask:0xf bank_mask:0xf
    v_add_f32_dpp v{x}, v{x}, v{x} quad_perm:[2,3,0,1] row_mask:0xf bank_mask:0xf
    v_add_f32_dpp v{x}, v{x}, v{x} quad_perm:[1,0,3,2] row_mask:0xf bank_mask:0xf""")
WS=f"s[{sWS}:{sWS+3}]"
def prologue():
    p(f"""s_cmp_ge_u32 s2, 256
    s_cbranch_scc1 Lend
    s_load_dwordx16 s[32:47], s[0:1], 0
    s_load_dwordx8 s[48:55], s[0:1], 64
    s_load_dwordx2 s[56:57], s[0:1], 96
    s_getpc_b64 s[58:59]
    v_lshlrev_b32 v16, 7, v0
    v_min_u32 v16, CODESZ, v16
    global_load_dword v17, v16, s[58:59]
    v_add_u32 v16, 0x8000, v16
    v_min_u32 v16, CODESZ, v16
    global_load_dword v18, v16, s[58:59]
    v_lshrrev_b32 v6, 6, v0
    v_and_b32 v{vLANE}, 63, v0
    v_readfirstlane_b32 s{sWV}, v6
    s_and_b32 s{sT}, s2, 7
    s_lshr_b32 s{sT+1}, s2, 3
    s_lshl_b32 s{sCP}, s{sT}, 5
    s_add_u32 s{sCP}, s{sCP}, s{sT+1}
    s_and_b32 s{sT+1}, s{sT+1}, 3
    s_lshl_b32 s{sRB}, s{sT}, 2
    s_add_u32 s{sRB}, s{sRB}, s{sT+1}
    s_lshr_b32 s{sCB}, s2, 5
    s_mov_b32 s{sHI}, 0xffff0000
    s_mov_b32 s{sPL}, 0x05040100
    s_mov_b32 s{sPH}, 0x07060302
    s_mov_b32 s{sEPS}, 0x3727c5ac
    s_mov_b32 s{sSPIN}, 400000
    s_mov_b32 s{sM1}, 0x22222222
    s_mov_b32 s{sM1+1}, 0x22222222
    s_mov_b32 s{sM2}, 0x44444444
    s_mov_b32 s{sM2+1}, 0x44444444
    s_mov_b32 s{sM3}, 0x88888888
    s_mov_b32 s{sM3+1}, 0x88888888
    s_lshl_b32 s{sTS}, s2, 2
    s_add_u32 s{sTS}, s{sTS}, s{sWV}
    s_lshl_b32 s{sTS}, s{sTS}, 8
    s_add_u32 s{sTS}, s{sTS}, {TS}
    v_lshlrev_b32 v{vT16}, 4, v0
    v_lshlrev_b32 v{vL16}, 4, v{vLANE}
    v_lshlrev_b32 v{vL8}, 3, v{vLANE}
    v_lshrrev_b32 v6, 4, v{vLANE}
    v_lshlrev_b32 v7, 6, v6
    v_xor_b32 v{vSW}, v{vL16}, v7""")
    srd(sX,32,0x200000); srd(sWS,56,WSN); srd(sOUT,52,0x200000); srd(sDBG,54,256)
    stamp('start')
vROW=20
vPAR=28
vWL=36
vXG=112
vIDX=96
def p_loads():
    p(f"""s_lshl_b32 s{sT}, s2, 13
    s_lshl_b32 s{sT+1}, s{sWV}, 11
    s_add_u32 s{sT}, s{sT}, s{sT+1}
    buffer_load_dwordx4 {v(vROW,4)}, v{vL16}, s[{sX}:{sX+3}], s{sT} offen
    buffer_load_dwordx4 {v(vROW+4,4)}, v{vL16}, s[{sX}:{sX+3}], s{sT} offen offset:1024
    s_lshl_b32 s{sT}, s{sCP}, 9
    v_lshl_add_u32 v6, v0, 1, s{sT}
    global_load_ushort v{vPAR}, v6, s[34:35]
    global_load_ushort v{vPAR+1}, v6, s[36:37]
    global_load_ushort v{vPAR+2}, v6, s[38:39]
    global_load_ushort v{vPAR+3}, v6, s[40:41]
    v_lshrrev_b32 v6, 7, v6
    v_and_b32 v6, -2, v6
    global_load_ushort v{vPAR+4}, v6, s[42:43]
    s_lshl_b32 s{sT}, s{sCP}, 2
    s_load_dword s{sD0}, s[44:45], s{sT}""")
    LA=newlab('w2'); LB=newlab('wj')
    p(f"""s_and_b32 s{sT}, s{sWV}, 1
    s_lshl_b32 s{sT+1}, s{sRB}, 1
    s_add_u32 s{sT}, s{sT}, s{sT+1}
    s_mul_i32 s{sT+9}, s{sWV}, 5120
    s_add_u32 s{sT+9}, s{sT+9}, {WST}
    s_cmp_ge_u32 s{sWV}, 2
    s_cselect_b32 s{sW}, s50, s48
    s_cselect_b32 s{sW+1}, s51, s49
    s_and_b32 s{sW+1}, s{sW+1}, 0xffff
    s_mov_b32 s{sW+2}, {512*1376*2}
    s_mov_b32 s{sW+3}, 0x20000
    s_cmp_ge_u32 s{sWV}, 2
    s_cbranch_scc1 {LA}
    s_lshr_b32 s{sT+1}, s{sT}, 4
    s_lshl_b32 s{sT+2}, s{sT+1}, 2
    s_add_u32 s{sT+2}, s{sT+2}, s{sT}
    s_and_b32 s{sT+2}, s{sT+2}, 15
    s_mul_i32 s{sT+2}, s{sT+2}, {32*2752}
    s_mul_i32 s{sT+3}, s{sCB}, 344
    s_add_u32 s{sT+2}, s{sT+2}, s{sT+3}
    s_mul_i32 s{sT+3}, s{sT+1}, 88
    s_add_u32 s{sT+2}, s{sT+2}, s{sT+3}
    s_lshl_b32 s{sT+4}, s{sCB}, 6
    s_add_u32 s{sT+4}, s{sT+4}, s{sT}
    s_mul_i32 s{sT+4}, s{sT+4}, 3072
    s_add_u32 s{sT+4}, s{sT+4}, {W1F}
    s_mov_b32 s{sT+5}, 0x7ff00000
    s_mov_b32 s{sT+14}, 0
    s_mov_b32 s{sT+6}, 0xf000f000
    s_mov_b32 s{sT+7}, 0xf000f000
    s_cmp_eq_u32 s{sT+1}, 3
    s_cselect_b32 s{sT+10}, 0x0f000f00, 0
    s_mov_b32 s{sT+11}, s{sT+10}""")
    for i in range(3):
        p(f"""v_add_u32 v14, {64*i}, v{vLANE}
        v_mul_u32_u24 v15, 171, v14
        v_lshrrev_b32 v15, 10, v15
        v_mul_u32_u24 v16, 6, v15
        v_sub_u32 v14, v14, v16
        v_lshlrev_b32 v14, 4, v14
        v_mul_u32_u24 v16, 2752, v15
        v_add3_u32 v{6+i}, v16, v14, s{sT+2}
        v_mul_u32_u24 v16, 160, v15
        v_add3_u32 v{10+i}, v16, v14, s{sT+9}""")
    p(f"""v_mov_b32 v9, {OOB}
    v_mov_b32 v13, {DUM}
    s_branch {LB}
    {LA}:
    s_mul_i32 s{sT+1}, s{sT}, 187
    s_lshr_b32 s{sT+1}, s{sT+1}, 11
    s_mul_i32 s{sT+2}, s{sT+1}, 11
    s_sub_u32 s{sT+2}, s{sT}, s{sT+2}
    s_mul_i32 s{sT+4}, s{sCB}, 44
    s_add_u32 s{sT+4}, s{sT+4}, s{sT}
    s_lshl_b32 s{sT+4}, s{sT+4}, 12
    s_add_u32 s{sT+4}, s{sT+4}, {W2F}
    s_cmp_ge_u32 s{sT}, 44
    s_cselect_b32 s{sT+5}, 0x7ff00000, 0
    s_mov_b32 s{sT+14}, s{sT+5}
    s_mov_b64 s[{sT+6}:{sT+7}], 0
    s_mov_b64 s[{sT+10}:{sT+11}], 0
    s_mul_i32 s{sT+1}, s{sT+1}, 344
    s_lshr_b32 s{sT+3}, s{sT+2}, 2
    s_mul_i32 s{sT+3}, s{sT+3}, 172
    s_and_b32 s{sT+8}, s{sT+2}, 3
    s_mul_i32 s{sT+8}, s{sT+8}, 44
    s_add_u32 s{sT+3}, s{sT+3}, s{sT+8}
    s_cmp_ge_u32 s{sT+2}, 8
    s_cselect_b64 s[{sT+12}:{sT+13}], -1, 0
    s_sub_u32 s{sT+2}, s{sT+2}, 8
    s_lshl_b32 s{sT+2}, s{sT+2}, 3
    s_lshl_b32 s{sT+8}, s{sCB}, 7
    v_and_b32 v19, 7, v{vLANE}
    v_lshlrev_b32 v19, 4, v19""")
    for i in range(4):
        p(f"""v_lshrrev_b32 v14, 3, v{vLANE}
        v_add_u32 v14, {8*i}, v14
        v_mul_u32_u24 v16, 160, v14
        v_add3_u32 v{10+i}, v16, v19, s{sT+9}
        v_lshrrev_b32 v15, 2, v14
        v_add_u32 v15, s{sT+2}, v15
        v_and_b32 v15, 31, v15
        v_mul_u32_u24 v16, 43, v15
        v_lshrrev_b32 v16, 7, v16
        v_mul_u32_u24 v52, 3, v16
        v_sub_u32 v15, v15, v52
        v_lshrrev_b32 v52, 2, v16
        v_mul_u32_u24 v52, 172, v52
        v_and_b32 v16, 3, v16
        v_mul_u32_u24 v53, 44, v16
        v_lshl_add_u32 v53, v15, 2, v53
        v_cmp_le_u32 vcc, 140, v53
        v_add3_u32 v52, v52, v53, 32
        v_and_b32 v53, 3, v14
        v_add_u32 v52, v52, v53
        v_mov_b32 v53, 0x100000
        v_cndmask_b32 v52, v52, v53, vcc
        v_add_u32 v14, s{sT+3}, v14
        v_cndmask_b32 v14, v14, v52, s[{sT+12}:{sT+13}]
        v_add_u32 v14, s{sT+1}, v14
        v_lshlrev_b32 v14, 10, v14
        v_add3_u32 v{6+i}, v14, v19, s{sT+8}""")
    p(f"{LB}:")
    for i in range(4): p(f"buffer_load_dwordx4 {v(vWL+4*i,4)}, v{6+i}, s[{sW}:{sW+3}], 0 offen")
    p(f"""s_lshl_b32 s{sT}, s{sCP}, 2
    v_lshl_add_u32 v6, v0, 11, s{sT}""")
    for q in range(4):
        p(f"""s_mov_b32 s{sT}, {q*0x80000}
        buffer_load_dword v{vXG+2*q}, v6, s[{sX}:{sX+3}], s{sT} offen
        buffer_load_dword v{vXG+2*q+1}, v6, s[{sX}:{sX+3}], s{sT} offen offset:1024""")
def p_idx():
    p("v_lshlrev_b32 v6, 3, v0\nv_mov_b32 v9, 1023")
    for i in range(15):
        d=vIDX+i
        p(f"""v_add_u32 v7, {7-i}, v6
        v_cvt_f32_i32 v8, v7
        v_cvt_pk_bf16_f32 v8, v8, 0
        v_subrev_u32 v8, {0x4300-128}, v8
        v_min_i32 v{d}, 0x80, v7
        v_max_i32 v{d}, v{d}, v8""")
        if i>7: p(f"v_cmp_gt_i32 vcc, 0, v7\nv_cndmask_b32 v{d}, v{d}, v9, vcc")
        p(f"v_lshlrev_b32 v{d}, 2, v{d}")
    p(f"""v_mov_b32 v8, 0
    v_and_b32 v6, 127, v0
    v_lshrrev_b32 v7, 7, v0
    v_mul_u32_u24 v7, 4608, v7
    v_lshl_add_u32 v6, v6, 2, v7
    v_add_u32 v6, {U}, v6
    ds_write_b32 v6, v8""")
def p_stats():
    t=56
    for r in range(2):
        for k in range(4):
            p(f"v_lshlrev_b32 v{t+2*k}, 16, v{vROW+4*r+k}\nv_and_b32 v{t+2*k+1}, s{sHI}, v{vROW+4*r+k}")
        S,Q=t+8+r,t+10+r
        p(f"v_add_f32 v{S}, v{t}, v{t+1}\nv_mul_f32 v{Q}, v{t}, v{t}\nv_fmac_f32 v{Q}, v{t+1}, v{t+1}")
        for k in range(2,8): p(f"v_add_f32 v{S}, v{S}, v{t+k}\nv_fmac_f32 v{Q}, v{t+k}, v{t+k}")
    S,Q=t+8,t+10
    p(f"""v_permlane32_swap_b32 v{S}, v{S+1}
    v_permlane32_swap_b32 v{Q}, v{Q+1}
    v_add_f32 v{S}, v{S}, v{S+1}
    v_add_f32 v{Q}, v{Q}, v{Q+1}
    v_mov_b32 v{S+1}, v{S}
    v_mov_b32 v{Q+1}, v{Q}
    v_permlane16_swap_b32 v{S}, v{S+1}
    v_permlane16_swap_b32 v{Q}, v{Q+1}
    v_add_f32 v{S}, v{S}, v{S+1}
    v_add_f32 v{Q}, v{Q}, v{Q+1}""")
    red16(S); red16(Q)
    p(f"""v_mul_f32 v{S}, 0x3b000000, v{S}
    v_mul_f32 v{Q}, 0x3b000000, v{Q}
    v_fma_f32 v{Q}, -v{S}, v{S}, v{Q}""")
    std_from_var(t,Q)
    p(f"""v_cvt_pk_bf16_f32 v{t}, v{S}, v{t}
    v_lshrrev_b32 v{t+1}, 3, v{vLANE}
    v_mov_b32 v{t+2}, {OOB}
    v_and_b32 v{t+3}, 31, v{vLANE}
    v_cmp_eq_u32 vcc, 0, v{t+3}
    v_cndmask_b32 v{t+1}, v{t+2}, v{t+1}, vcc
    s_lshl_b32 s{sT}, s2, 5
    s_lshl_b32 s{sT+1}, s{sWV}, 3
    s_add_u32 s{sT}, s{sT}, s{sT+1}
    s_add_u32 s{sT}, s{sT}, {ST0}
    buffer_store_dword v{t}, v{t+1}, {WS}, s{sT} offen sc1""")
def p_weights():
    for i in range(4): p(f"ds_write_b128 v{10+i}, {v(vWL+4*i,4)}")
    p(f"""v_lshrrev_b32 v6, 2, v{vLANE}
    v_mul_u32_u24 v6, 160, v6
    v_and_b32 v7, 3, v{vLANE}
    v_lshlrev_b32 v7, 3, v7
    v_add3_u32 v6, v6, v7, s{sT+9}
    v_mov_b32 v7, 0x3f803f80""")
    for t in range(4):
        for h in range(2): p(f"ds_read_b64_tr_b16 {v(vWL+4*t+2*h,2)}, v6 offset:{t*32+h*2560}")
    for k in range(4):
        p(f"v_cndmask_b32 v{vWL+8+k}, v{vWL+8+k}, v7, s[{sT+6}:{sT+7}]\nv_cndmask_b32 v{vWL+8+k}, v{vWL+8+k}, 0, s[{sT+10}:{sT+11}]")
    p(f"v_or_b32 v8, s{sT+14}, v{vL16}\nv_or_b32 v9, s{sT+5}, v{vL16}")
    for t in range(4):
        p(f"buffer_store_dwordx4 {v(vWL+4*t,4)}, v{9 if t==3 else 8}, {WS}, s{sT+4} offen offset:{t*1024} sc1")
    L=newlab('z')
    p(f"""s_cmp_ge_u32 s2, 8
    s_cbranch_scc1 {L}
    s_lshl_b32 s{sT}, s2, 14
    s_add_u32 s{sT}, s{sT}, {CNT}
    v_lshlrev_b32 v6, 6, v0
    v_mov_b32 v7, 0
    buffer_store_dword v7, v6, {WS}, s{sT} offen sc1
    s_waitcnt vmcnt(0)
    {L}:""")
def cmul(d,x,y):
    p(f"""v_pk_mul_f32 {v(d,2)}, {v(x,2)}, {v(y,2)} op_sel_hi:[1,0]
    v_pk_fma_f32 {v(d,2)}, {v(x,2)}, {v(y,2)}, {v(d,2)} op_sel:[1,1,0] op_sel_hi:[0,1,1] neg_lo:[0,1,0]""")
RS=528; TAB=53*RS
def kgen():
    lA,Ai,Cr,Ci,ld=[vPAR+i for i in range(5)]
    for r in (lA,Ai,Cr,Ci,ld): p(f"v_lshlrev_b32 v{r}, 16, v{r}")
    p(f"v_mul_f32 v{lA}, 0x3fb8aa3b, v{lA}\nv_mul_f32 v{ld}, 0x3fb8aa3b, v{ld}\nv_exp_f32 v{lA}, v{lA}\nv_exp_f32 v{ld}, v{ld}")
    bfround(lA,lA); bfround(ld,ld)
    p(f"""v_mul_f32 v{lA}, v{lA}, v{ld}
    v_mul_f32 v{Ai}, v{Ai}, v{ld}
    v_add_f32 v{ld}, v{ld}, v{ld}
    v_mul_f32 v{lA}, 0xbfb8aa3b, v{lA}
    v_mul_f32 v{Ai}, 0.15915494, v{Ai}
    v_mul_f32 v{Cr}, v{Cr}, v{ld}
    v_mul_f32 v{Ci}, v{Ci}, v{ld}""")
    Z={}; base=36
    import struct
    fl=lambda x:hex(struct.unpack('<I',struct.pack('<f',x))[0])
    for k,pw in enumerate([1,8,64,128,192,256]):
        d=base+2*k; Z[pw]=d
        p(f"""v_mul_f32 v6, {fl(pw)}, v{lA}
        v_mul_f32 v7, {fl(pw)}, v{Ai}
        v_exp_f32 v6, v6
        v_fract_f32 v7, v7
        v_cos_f32 v{d}, v7
        v_sin_f32 v{d+1}, v7
        v_mul_f32 v{d}, v{d}, v6
        v_mul_f32 v{d+1}, v{d+1}, v6""")
    p(f"""v_lshrrev_b32 v6, 7, v0
    v_mul_u32_u24 v6, {TAB}, v6
    v_and_b32 v7, 127, v0
    v_lshl_add_u32 v6, v7, 2, v6""")
    tc=[0]
    def put(row,x,neg):
        t=8+(tc[0]%4); tc[0]+=1
        p(f"v_cvt_pk_bf16_f32 v{t}, v{x}, {'-' if neg else ''}v{x+1}\nds_write_b32 v6, v{t} offset:{row*RS}")
    c=[48,50,52,54]; c2=[56,58,60,62]
    p(f"v_mov_b32 v8, 0x3f80\nds_write_b32 v6, v8 offset:{21*RS}")
    put(22,Z[8],0); put(21+8,Z[64],0); put(21+16,Z[128],0); put(21+24,Z[192],0)
    cur=[None,Z[64],Z[128],Z[192]]
    for st in range(1,8):
        dst=c if st%2 else c2
        for ch in range(4):
            if ch==0 and st==1: cur[0]=Z[8]; continue
            cmul(dst[ch],cur[ch],Z[8]); cur[ch]=dst[ch]
        for ch in range(4):
            if ch==0 and st==1: continue
            put(21+8*ch+st,cur[ch],0)
    C0=Cr; assert Cr%2==0
    z2,z4=64,66
    cmul(z2,Z[1],Z[1]); put(0,C0,1); cmul(z4,z2,z2)
    e=[68,70]; f=[72,74]; g=[76,78]
    x=C0; y=C0
    big={1:8,2:12,3:14,4:16,5:17,6:18,7:19,8:20}
    for st in range(1,9):
        if st<8: cmul(e[st%2],x,Z[1]); x=e[st%2]
        cmul(f[st%2],y,Z[256]); y=f[st%2]
        if st<8: put(st,x,1)
        put(big[st],y,1)
        if st==1:
            w=y
            for k in range(3): cmul(g[k%2],w,z2); w=g[k%2]; put(9+k,w,1)
        if st in(2,3): cmul(g[0],y,z4); put(big[st]+1,g[0],1)
    barrier()
    p(f"""s_lshr_b32 s{sT}, s{sWV}, 1
    s_mul_i32 s{sT}, s{sT}, {TAB}
    s_and_b32 s{sT+1}, s{sWV}, 1
    s_mul_i32 s{sT+2}, s{sT+1}, {16*RS}
    v_and_b32 v7, 15, v{vLANE}
    v_mul_u32_u24 v6, {RS}, v7
    v_lshrrev_b32 v8, 4, v{vLANE}
    v_lshlrev_b32 v9, 4, v8
    v_add3_u32 v6, v6, v9, s{sT}
    v_add_u32 v9, s{sT+2}, v6""")
    fr=36
    for half in range(2):
        for ks in range(4*half,4*half+4):
            b=fr+12*(ks%4)
            p(f"ds_read_b128 {v(b,4)}, v6 offset:{ks*64}\nds_read_b128 {v(b+4,4)}, v6 offset:{ks*64+16*RS}\nds_read_b128 {v(b+8,4)}, v9 offset:{ks*64+21*RS}")
        for ks in range(4*half,4*half+4):
            b=fr+12*(ks%4)
            for t in range(2):
                p(f"v_mfma_f32_16x16x32_bf16 {v(84+4*t,4)}, {v(b+4*t,4)}, {v(b+8,4)}, {'0' if ks==0 else v(84+4*t,4)}")
    p(f"""s_lshl_b32 s{sT+1}, s{sT+1}, 4
    s_and_b32 s{sT}, s{sWV}, 2
    s_add_u32 s{sT}, s{sT}, {TT}
    v_add_u32 v7, s{sT+1}, v7
    v_max_u32 v9, 1, v8
    v_sub_u32 v9, 4, v9
    v_lshlrev_b32 v9, v9, v7
    v_lshlrev_b32 v10, 2, v8
    v_lshlrev_b32 v11, 7, v8
    v_cmp_gt_u32 vcc, 2, v8
    v_cndmask_b32 v10, v11, v10, vcc
    v_add_u32 v9, v9, v10
    v_lshl_add_u32 v9, v9, 2, s{sT}
    v_cmp_eq_u32 vcc, 3, v8
    v_mov_b32 v10, 8
    v_mov_b32 v12, 0x100
    v_cndmask_b32 v10, v10, v12, vcc
    v_add_u32 v10, v10, v9
    v_add_u32 v11, v11, v7
    v_lshl_add_u32 v11, v11, 2, s{sT}
    v_cvt_pk_bf16_f32 v84, v84, v85
    v_cvt_pk_bf16_f32 v86, v86, v87
    v_cvt_pk_bf16_f32 v88, v88, v89
    v_cvt_pk_bf16_f32 v90, v90, v91
    v_cmp_eq_u32 vcc, 63, v{vLANE}
    v_cndmask_b32 v90, v90, 0, vcc
    ds_write_b16 v9, v84
    ds_write_b16_d16_hi v9, v84 offset:4
    ds_write_b16 v10, v86
    ds_write_b16_d16_hi v10, v86 offset:4
    ds_write_b16 v11, v88 offset:2048
    ds_write_b16_d16_hi v11, v88 offset:{2048+128}
    ds_write_b16 v11, v90 offset:{2048+256}
    ds_write_b16_d16_hi v11, v90 offset:{2048+384}""")
    barrier()
    E=36
    p(f"v_mov_b32 v6, {TT}")
    for i in range(15): p(f"v_add_u32 v{vIDX+i}, v6, v{vIDX+i}\nds_read_b32 v{E+i}, v{vIDX+i}")
    p(f"""v_mov_b32 v8, 0
    v_lshrrev_b32 v6, 2, v{vLANE}
    v_mul_u32_u24 v6, 4160, v6
    v_and_b32 v7, 3, v{vLANE}
    v_lshl_add_u32 v6, v7, 2, v6
    ds_write_b32 v6, v8 offset:{KC}""")
    q=0
    for ch in range(2):
        sel=sPL if ch==0 else sPH
        for j0 in range(8):
            d=52+4*(q%8); q+=1
            for k in range(4):
                i=7-j0+2*k
                p(f"v_perm_b32 v{d+k}, v{E+i+1}, v{E+i}, s{sel}")
            p(f"ds_write_b128 v{vT16}, {v(d,4)} offset:{KC+ch*33280+j0*4160+16}")
def load_weights():
    l=P()
    l(f"""s_lshl_b32 s{sT}, s{sCB}, 2
    s_add_u32 s{sT}, s{sT}, s{sWV}
    s_mul_i32 s{sT+1}, s{sT}, {48*1024}
    s_mul_i32 s{sT+2}, s{sT}, {44*1024}
    s_add_u32 s{sT+2}, s{sT+2}, {W2F}""")
    for f in range(48):
        if f and f%4==0: l(f"s_add_u32 s{sT+1}, s{sT+1}, 4096")
        l(f"buffer_load_dwordx4 {W1(f//3,f%3)}, v{vL16}, {WS}, s{sT+1} offen offset:{(f%4)*1024} sc1")
    l2=P()
    for f in range(44):
        if f and f%4==0: l2(f"s_add_u32 s{sT+2}, s{sT+2}, 4096")
        l2(f"buffer_load_dwordx4 {W2(f//4,f%4)}, v{vL16}, {WS}, s{sT+2} offen offset:{(f%4)*1024} sc1")
    return l,l2
def sched(seq,pool,ld,dist=6):
    out=P(); where={}; free=list(pool); n=len(seq)
    uses={}
    for i,(ka,kb,_,_) in enumerate(seq):
        uses.setdefault(ka,[]).append(i); uses.setdefault(kb,[]).append(i)
    def nxt(k,i):
        for u in uses[k]:
            if u>=i: return u
        return 10**9
    def fetch(i,limit,horizon):
        c=0
        for j in range(i,min(n,horizon+1)):
            for k in seq[j][:2]:
                if k in where: continue
                if c>=limit: return
                if free: r=free.pop(0)
                else:
                    vic=max(where,key=lambda q:nxt(q,i))
                    if nxt(vic,i)<=j: return
                    r=where.pop(vic)
                where[k]=r; out(ld(k,r)); c+=1
    fetch(0,99,dist)
    for i,(ka,kb,acc,first) in enumerate(seq):
        fetch(i,99,i)
        out(f"v_mfma_f32_16x16x32_bf16 {v(acc,4)}, {v(where[ka],4)}, {v(where[kb],4)}, {'0' if first else v(acc,4)}")
        for k in (ka,kb):
            if k in where and nxt(k,i+1)>=10**9: free.append(where.pop(k))
        fetch(i+1,1,i+1+dist)
    return out
def conv(layer,side):
    st=48
    if layer==0:
        p(f"v_lshlrev_b32 v6, 3, v0")
        for q in range(4): p(f"s_mov_b32 s{sT+3}, {ST0+q*2048}\nbuffer_load_dwordx2 {v(st+2*q,2)}, v6, {WS}, s{sT+3} offen sc1")
        p(f"s_and_b32 s{sD1}, s{sD0}, s{sHI}\ns_lshl_b32 s{sD0}, s{sD0}, 16")
        p.extend(side[0])
    else:
        p(f"""v_lshrrev_b32 v6, 1, v0
        v_lshlrev_b32 v6, 12, v6
        v_and_b32 v7, 1, v0
        v_lshl_add_u32 v6, v7, 2, v6
        s_lshl_b32 s{sT}, s{sCP}, 4
        v_add_u32 v6, s{sT}, v6""")
        for q in range(4): p(f"""s_mov_b32 s{sT+3}, {X2+q*0x80000}
            buffer_load_dword v{vXG+2*q}, v6, {WS}, s{sT+3} offen sc1
            buffer_load_dword v{vXG+2*q+1}, v6, {WS}, s{sT+3} offen offset:8 sc1""")
    p(f"""v_lshlrev_b32 v8, 2, v0
    v_add_u32 v8, {U+512}, v8
    v_lshlrev_b32 v9, 3, v0
    v_add_u32 v9, {BASE}, v9""")
    def ldst(q,b):
        for c in range(8): p(f"s_mov_b32 s{sT+3}, {ST2+c*16384+q*4096}\nbuffer_load_dwordx4 {v(b+4*c,4)}, v{vT16}, {WS}, s{sT+3} offen sc1")
    if layer: ldst(0,48); ldst(1,80)
    for q in range(4):
        m0,r0,m1,r1=16,17,18,19
        if layer==0:
            p(f"""v_lshlrev_b32 v{m0}, 16, v{st+2*q}
            v_and_b32 v{r0}, s{sHI}, v{st+2*q}
            v_lshlrev_b32 v{m1}, 16, v{st+2*q+1}
            v_and_b32 v{r1}, s{sHI}, v{st+2*q+1}""")
        else:
            b=48+32*(q%2)
            for h in (16,8,4):
                for k in range(0,h,2): p(f"v_pk_add_f32 {v(b+k,2)}, {v(b+k,2)}, {v(b+h+k,2)}")
            p(f"""v_mul_f32 v{m0}, 0x3b000000, v{b}
            v_mul_f32 v{m1}, 0x3b000000, v{b+2}
            v_mul_f32 v20, 0x3b000000, v{b+1}
            v_mul_f32 v21, 0x3b000000, v{b+3}
            v_fma_f32 v20, -v{m0}, v{m0}, v20
            v_fma_f32 v21, -v{m1}, v{m1}, v21""")
            if q<2: ldst(q+2,b)
            std_from_var(r0,20); std_from_var(r1,21)
        g0,g1=vXG+2*q,vXG+2*q+1
        if layer==0: p(f"v_lshlrev_b32 v20, 16, v{g0}\nv_and_b32 v22, s{sHI}, v{g0}\nv_lshlrev_b32 v21, 16, v{g1}\nv_and_b32 v23, s{sHI}, v{g1}")
        else: p(f"v_lshlrev_b32 v20, 16, v{g0}\nv_and_b32 v21, s{sHI}, v{g0}\nv_lshlrev_b32 v22, 16, v{g1}\nv_and_b32 v23, s{sHI}, v{g1}")
        p(f"""v_rcp_f32 v{r0}, v{r0}
        v_rcp_f32 v{r1}, v{r1}
        v_sub_f32 v24, v20, v{m0}
        v_sub_f32 v25, v21, v{m1}
        v_sub_f32 v26, v22, v{m0}
        v_sub_f32 v27, v23, v{m1}
        v_mul_f32 v24, v24, v{r0}
        v_mul_f32 v25, v25, v{r1}
        v_mul_f32 v26, v26, v{r0}
        v_mul_f32 v27, v27, v{r1}
        v_cvt_pk_bf16_f32 v28, v24, v25
        v_cvt_pk_bf16_f32 v29, v26, v27
        v_fmac_f32 v20, s{sD0}, v24
        v_fmac_f32 v21, s{sD0}, v25
        v_fmac_f32 v22, s{sD1}, v26
        v_fmac_f32 v23, s{sD1}, v27
        ds_write_b32 v8, v28 offset:{q*1024}
        ds_write_b32 v8, v29 offset:{4608+q*1024}
        ds_write_b64 v9, v[20:21] offset:{q*2048}
        ds_write_b64 v9, v[22:23] offset:{8192+q*2048}""")
    p(f"""s_lshr_b32 s{sT+3}, s{sWV}, 1
    s_and_b32 s{sT+4}, s{sWV}, 1
    s_lshl_b32 s{sT+4}, s{sT+4}, 8
    s_mul_i32 s{sT+5}, s{sT+3}, 33280
    s_add_u32 s{sT+5}, s{sT+5}, s{sT+4}
    s_add_u32 s{sT+5}, s{sT+5}, {KC+48}
    s_mul_i32 s{sT+3}, s{sT+3}, 4608
    s_sub_u32 s{sT+3}, s{sT+3}, s{sT+4}
    s_add_u32 s{sT+3}, s{sT+3}, {U+288}
    v_and_b32 v6, 7, v{vLANE}
    v_mul_u32_u24 v6, 4160, v6
    v_bfe_u32 v7, v{vLANE}, 3, 1
    v_lshrrev_b32 v10, 4, v{vLANE}
    v_sub_u32 v7, v7, v10
    v_lshlrev_b32 v7, 4, v7
    v_add3_u32 v6, v6, v7, s{sT+5}
    v_and_b32 v7, 15, v{vLANE}
    v_lshlrev_b32 v7, 5, v7
    v_lshlrev_b32 v10, 4, v10
    v_add3_u32 v7, v7, v10, s{sT+3}""")
    barrier()
    stamp(f'conv{layer} mfma start')
    seq=[]; seen=set()
    for r in range(4):
        for sm in range(8):
            for aa in range(sm+1):
                seq.append((('A',aa,r),('B',sm-aa,r),16+4*sm,sm not in seen)); seen.add(sm)
    seq=[]; seen=set()
    for r in range(4):
        for aa in range(8):
            for b in range(8-aa):
                seq.append((('A',aa,r),('B',b,r),16+4*(aa+b),(aa+b) not in seen)); seen.add(aa+b)
    def ld(k,r):
        if k[0]=='A': return f"ds_read_b128 {v(r,4)}, v6 offset:{512*k[1]+64*k[2]}"
        return f"ds_read_b128 {v(r,4)}, v7 offset:{512*k[1]+64*(3-k[2])}"
    main=sched(seq,[48+4*i for i in range(16)],ld,dist=10)
    if layer==0: main=interleave(main,side[1],start=0,per=1,every=2)
    p.extend(main)
    stamp(f'conv{layer} mfma end')
    p(f"""s_lshl_b32 s{sT+3}, s{sWV}, 11
    s_add_u32 s{sT+3}, s{sT+3}, {XT}
    v_add_u32 v8, s{sT+3}, v{vSW}""")
    for T in range(8): p(f"ds_write_b128 v8, {v(16+4*T,4)} offset:{(T//2)*8192+(T%2)*1024}")
    p(f"""v_and_b32 v6, 3, v0
    v_bfe_u32 v7, v0, 2, 1
    v_bfe_u32 v8, v0, 3, 4
    v_lshlrev_b32 v9, 2, v6
    v_xor_b32 v9, v9, v8
    v_lshlrev_b32 v9, 4, v9
    v_lshl_add_u32 v9, v6, 8, v9
    v_lshl_add_u32 v9, v7, 12, v9
    v_lshrrev_b32 v10, 7, v0
    v_lshl_add_u32 v9, v10, 10, v9
    v_add_u32 v9, {XT}, v9
    v_lshrrev_b32 v8, 3, v0
    v_lshlrev_b32 v10, 6, v8
    v_lshl_add_u32 v10, v6, 4, v10
    v_lshl_add_u32 v10, v7, 13, v10
    v_add_u32 v10, {BASE}, v10
    v_lshlrev_b32 v8, 14, v8
    v_and_b32 v6, 7, v0
    v_lshl_add_u32 v8, v6, 3, v8
    s_lshl_b32 s{sT+3}, s{sCP}, 6
    v_add_u32 v8, s{sT+3}, v8""")
    barrier()
    for q in range(4):
        b=48+12*q
        p(f"ds_read_b128 {v(b,4)}, v9 offset:{q*8192}\nds_read_b128 {v(b+4,4)}, v9 offset:{q*8192+2048}\nds_read_b128 {v(b+8,4)}, v10 offset:{q*2048}")
    for q in range(4):
        b=48+12*q
        p(f"""v_pk_add_f32 {v(b,2)}, {v(b,2)}, {v(b+4,2)}
        v_pk_add_f32 {v(b+2,2)}, {v(b+2,2)}, {v(b+6,2)}
        v_pk_add_f32 {v(b,2)}, {v(b,2)}, {v(b+8,2)}
        v_pk_add_f32 {v(b+2,2)}, {v(b+2,2)}, {v(b+10,2)}
        v_cvt_pk_bf16_f32 v{b}, v{b}, v{b+1}
        v_cvt_pk_bf16_f32 v{b+1}, v{b+2}, v{b+3}
        s_mov_b32 s{sT+3}, {X1[layer]+q*0x80000}
        buffer_store_dwordx2 {v(b,2)}, v8, {WS}, s{sT+3} offen sc1""")
def colsum():
    p("v_mov_b32 v16, 0x3f803f80\nv_mov_b32 v17, v16\nv_mov_b32 v18, v16\nv_mov_b32 v19, v16")
    for ks in range(16):
        for t in range(3): p(f"v_mfma_f32_16x16x32_bf16 {v(vCS+4*t,4)}, {W1(ks,t)}, v[16:19], {'0' if ks==0 else v(vCS+4*t,4)}")
def g1(layer):
    p(f"s_lshl_b32 s{sT}, s{sRB}, 14\ns_add_u32 s{sT}, s{sT}, {X1[layer]}")
    for j in range(4):
        for i in range(4):
            p(f"s_add_u32 s{sT+1}, s{sT}, {j*0x80000+i*4096}\nbuffer_load_dwordx4 {v(56+16*j+4*i,4)}, v{vT16}, {WS}, s{sT+1} offen sc1")
    p(f"v_add_u32 v6, {XT}, v{vT16}")
    for q in range(4): p(f"""s_add_u32 s{sT}, s{sWV}, {q}
        s_and_b32 s{sT}, s{sT}, 3
        s_lshl_b32 s{sT}, s{sT}, 12
        s_add_u32 s{sT}, s{sT}, {XT}
        v_add_u32 v{7+q}, s{sT}, v{vL8}""")
    p(f"""s_lshl_b32 s{sT}, s{sRB}, 4
    s_lshr_b32 s{sT+1}, s{sCB}, 1
    s_add_u32 s{sT}, s{sT}, s{sT+1}
    s_mul_i32 s{sT}, s{sT}, 11264
    s_add_u32 s{sT}, s{sT}, {H[layer]}
    s_and_b32 s{sT+1}, s{sCB}, 1
    s_lshl_b32 s{sT+1}, s{sT+1}, 2
    s_add_u32 s{sT+1}, s{sT+1}, s{sWV}
    s_lshl_b32 s{sT+2}, s{sT+1}, 10
    s_add_u32 s{sT+2}, s{sT+2}, s{sT}
    s_mul_i32 s{sT+3}, s{sT+1}, 384
    s_add_u32 s{sT+3}, s{sT+3}, s{sT}
    s_add_u32 s{sT+3}, s{sT+3}, 8192
    v_mov_b32 v12, {OOB}
    v_cmp_gt_u32 vcc, 48, v{vLANE}
    v_cndmask_b32 v11, v12, v{vL8}, vcc
    v_and_b32 v13, 15, v{vLANE}
    v_lshrrev_b32 v14, 2, v13
    v_lshrrev_b32 v15, 4, v{vLANE}
    v_cmp_eq_u32 vcc, v14, v15
    s_lshl_b32 s{sT+4}, s{sWV}, 2
    s_add_u32 s{sT+4}, s{sT+4}, {SQ}
    v_lshl_add_u32 v12, v13, 4, s{sT+4}
    v_mov_b32 v14, {DUM}
    v_cndmask_b32 v12, v14, v12, vcc
    v_lshlrev_b32 v13, 2, v13
    v_add_u32 v13, {MN}, v13""")
    if layer==0:
        p(f"""s_lshl_b32 s{sT+4}, s{sCB}, 11
        s_lshl_b32 s{sT+5}, s{sWV}, 3
        s_add_u32 s{sT+4}, s{sT+4}, s{sT+5}
        s_add_u32 s{sT+4}, s{sT+4}, {XT}
        v_lshl_add_u32 v120, v{vLANE}, 5, s{sT+4}""")
    else:
        p(f"""s_lshl_b32 s{sT+4}, s{sCB}, 11
        s_lshl_b32 s{sT+5}, s{sWV}, 3
        s_add_u32 s{sT+4}, s{sT+4}, s{sT+5}
        s_add_u32 s{sT+4}, s{sT+4}, {XT}
        v_and_b32 v14, 3, v{vLANE}
        v_bfe_u32 v15, v{vLANE}, 2, 2
        v_lshl_add_u32 v14, v14, 2, v15
        v_and_b32 v15, 48, v{vLANE}
        v_add_u32 v14, v14, v15
        v_lshl_add_u32 v120, v14, 5, s{sT+4}""")
    def stage(j):
        l=P()
        for i in range(4): l(f"ds_write_b128 v6, {v(56+16*j+4*i,4)} offset:{j*16384+i*4096}")
        return l
    p.extend(stage(0))
    for j in range(4):
        barrier()
        if j==0: stamp(f'g1_{layer} first tile staged')
        acc=16; F=[40,44,48,52]
        m=P()
        def ldf(ks):
            for h in range(2): m(f"ds_read_b64_tr_b16 {v(F[ks%4]+2*h,2)}, v{7+ks//4} offset:{j*16384+(ks%4)*1024+h*512}")
        ldf(0); ldf(1); ldf(2)
        for ks in range(16):
            for t in range(3):
                m(f"v_mfma_f32_16x16x32_bf16 {v(acc+4*t,4)}, {W1(ks,t)}, {v(F[ks%4],4)}, {'0' if ks==0 else v(acc+4*t,4)}")
                if t==0 and ks+3<16: ldf(ks+3)
            if ks<4: m(f"v_mfma_f32_16x16x32_bf16 {v(acc+12,4)}, {v(F[ks%4],4)}, {v(F[ks%4],4)}, {'0' if ks==0 else v(acc+12,4)}")
        side=P()
        side(f"{'ds_read_b64' if layer==0 else 'ds_read_b64_tr_b16'} {v(vRES+2*j,2)}, v120 offset:{j*16384}")
        side(f"""v_cndmask_b32 v32, v28, v29, s[{sM1}:{sM1+1}]
        v_cndmask_b32 v32, v32, v30, s[{sM2}:{sM2+1}]
        v_cndmask_b32 v32, v32, v31, s[{sM3}:{sM3+1}]
        ds_write_b32 v12, v32 offset:{j*256}""")
        if j<3: side.extend(stage(j+1))
        p.extend(interleave(m,side,start=24,per=1,every=2))
        p(f"""v_mul_f32 v32, 0xbb000000, v24
        v_mul_f32 v33, 0xbb000000, v24
        v_permlane32_swap_b32 v32, v33
        v_mov_b32 v32, v33
        v_permlane16_swap_b32 v32, v33
        ds_write_b32 v13, v33 offset:{j*64}""")
        for k in range(12): p(f"v_fmac_f32 v{acc+k}, v33, v{vCS+k}")
        for k in range(6): p(f"v_cvt_pk_bf16_f32 v{34+k}, v{acc+2*k}, v{acc+2*k+1}")
        for k in range(6): p(f"v_pk_max_i16 v{34+k}, v{34+k}, 0")
        p(f"""buffer_store_dwordx4 v[34:37], v{vL16}, {WS}, s{sT+2} offen sc1
        buffer_store_dwordx2 v[38:39], v11, {WS}, s{sT+3} offen sc1
        s_add_u32 s{sT+2}, s{sT+2}, {4*11264}
        s_add_u32 s{sT+3}, s{sT+3}, {4*11264}""")
def rcomp():
    p(f"""v_bfe_u32 v6, v{vLANE}, 2, 2
    v_and_b32 v7, 3, v{vLANE}
    v_lshl_add_u32 v6, v6, 4, v7
    s_lshl_b32 s{sT}, s{sWV}, 2
    v_add_u32 v6, s{sT}, v6
    v_lshlrev_b32 v7, 4, v6
    v_add_u32 v7, {SQ}, v7
    v_lshlrev_b32 v6, 2, v6
    v_add_u32 v6, {MN}, v6
    ds_read_b128 v[16:19], v7
    ds_read_b32 v20, v6
    v_add_f32 v16, v16, v17
    v_add_f32 v18, v18, v19
    v_add_f32 v16, v16, v18
    v_mul_f32 v16, 0x3b000000, v16
    v_fma_f32 v16, -v20, v20, v16""")
    std_from_var(vR,16); p(f"v_rcp_f32 v{vR}, v{vR}")
def g2(layer):
    HB=[32,76]
    p(f"""s_lshl_b32 s{sT}, s{sRB}, 4
    s_add_u32 s{sT}, s{sT}, s{sWV}
    s_mul_i32 s{sT}, s{sT}, 11264
    s_add_u32 s{sT}, s{sT}, {H[layer]}""")
    def ldh(j):
        l=P(); b=HB[j%2]
        for ks in range(11):
            if ks%4==0: l(f"s_add_u32 s{sT+1}, s{sT}, {j*4*11264+ks*1024}")
            if ks<8: l(f"buffer_load_dwordx4 {v(b+4*ks,4)}, v{vL16}, {WS}, s{sT+1} offen offset:{(ks%4)*1024} sc1")
            else:
                for h in range(2): l(f"buffer_load_dwordx2 {v(b+4*ks+2*h,2)}, v{vL8}, {WS}, s{sT+1} offen offset:{(ks%4)*1024+h*512} sc1")
        return l
    p.extend(ldh(0)); p.extend(ldh(1))
    p(f"""s_lshl_b32 s{sT+2}, s{sWV}, 12
    s_add_u32 s{sT+2}, s{sT+2}, {XT}
    v_add_u32 v6, s{sT+2}, v{vSW}""")
    if layer==0:
        p(f"""s_lshl_b32 s{sT+2}, s{sWV}, 2
        v_and_b32 v7, 15, v{vLANE}
        v_xor_b32 v7, s{sT+2}, v7
        v_lshlrev_b32 v7, 4, v7
        v_lshrrev_b32 v8, 4, v{vLANE}
        v_lshl_add_u32 v7, v8, 10, v7
        s_lshl_b32 s{sT+2}, s{sWV}, 8
        s_add_u32 s{sT+2}, s{sT+2}, {XT}
        v_add_u32 v7, s{sT+2}, v7
        s_lshl_b32 s{sT+2}, s{sRB}, 2
        s_add_u32 s{sT+2}, s{sT+2}, s{sWV}
        s_lshl_b32 s{sT+3}, s{sT+2}, 5
        s_lshl_b32 s{sT+2}, s{sT+2}, 12
        s_lshl_b32 s{sT+4}, s{sCB}, 9
        s_add_u32 s{sT+2}, s{sT+2}, s{sT+4}
        s_add_u32 s{sT+2}, s{sT+2}, {X2}
        s_lshl_b32 s{sT+4}, s{sCB}, 14
        s_add_u32 s{sT+3}, s{sT+3}, s{sT+4}
        s_add_u32 s{sT+3}, s{sT+3}, {ST2}
        v_lshrrev_b32 v8, 1, v{vLANE}
        v_and_b32 v9, 7, v{vLANE}
        v_cmp_eq_u32 vcc, 0, v9
        v_mov_b32 v9, {OOB}
        v_cndmask_b32 v8, v9, v8, vcc""")
    else:
        p(f"""s_lshl_b32 s{sT+2}, s{sWV}, 2
        v_and_b32 v9, 3, v{vLANE}
        v_and_b32 v7, 15, v{vLANE}
        v_xor_b32 v7, s{sT+2}, v7
        v_lshlrev_b32 v7, 4, v7
        v_lshrrev_b32 v8, 2, v{vLANE}
        v_lshl_add_u32 v7, v8, 8, v7
        v_add_u32 v7, {XT}, v7
        v_lshlrev_b32 v8, 3, v8
        v_lshl_add_u32 v8, v9, 10, v8
        v_lshlrev_b32 v9, 2, v9
        s_lshl_b32 s{sT+2}, s{sRB}, 2
        s_add_u32 s{sT+2}, s{sT+2}, s{sWV}
        s_lshl_b32 s{sT+2}, s{sT+2}, 12
        s_lshl_b32 s{sT+4}, s{sCB}, 7
        s_add_u32 s{sT+2}, s{sT+2}, s{sT+4}""")
    for j in range(4):
        b=HB[j%2]; acc=16
        for ks in range(11):
            for t in range(4):
                c='0' if ks==0 else v(acc+4*t,4)
                if layer==0: p(f"v_mfma_f32_16x16x32_bf16 {v(acc+4*t,4)}, {v(b+4*ks,4)}, {W2(ks,t)}, {c}")
                else: p(f"v_mfma_f32_16x16x32_bf16 {v(acc+4*t,4)}, {W2(ks,t)}, {v(b+4*ks,4)}, {c}")
        if j==0: stamp(f'g2_{layer} first tile done')
        if j<2: p.extend(ldh(j+2))
        ro=(j%2)*16384
        for t in range(4): p(f"ds_write_b128 v6, {v(acc+4*t,4)} offset:{ro+t*1024}")
        barrier()
        for sw in range(4): p(f"ds_read_b128 {v(acc+4*sw,4)}, v7 offset:{ro+sw*4096}")
        if layer==0:
            for e in range(4): p(f"v_readlane_b32 s{sT+6+e}, v{vR}, {4*j+e}")
        else: p(f"ds_bpermute_b32 v14, v9, v{vR} offset:{16*j}")
        p(f"""v_lshlrev_b32 v10, 16, v{vRES+2*j}
        v_and_b32 v11, s{sHI}, v{vRES+2*j}
        v_lshlrev_b32 v12, 16, v{vRES+2*j+1}
        v_and_b32 v13, s{sHI}, v{vRES+2*j+1}
        v_pk_add_f32 v[16:17], v[16:17], v[20:21]
        v_pk_add_f32 v[18:19], v[18:19], v[22:23]
        v_pk_add_f32 v[24:25], v[24:25], v[28:29]
        v_pk_add_f32 v[26:27], v[26:27], v[30:31]
        v_pk_add_f32 v[16:17], v[16:17], v[24:25]
        v_pk_add_f32 v[18:19], v[18:19], v[26:27]""")
        for e in range(4): p(f"v_fmac_f32 v{10+e}, {('s%d'%(sT+6+e)) if layer==0 else 'v14'}, v{16+e}")
        p("v_cvt_pk_bf16_f32 v120, v10, v11\nv_cvt_pk_bf16_f32 v121, v12, v13")
        if layer==0:
            p(f"""buffer_store_dwordx2 v[120:121], v{vL8}, {WS}, s{sT+2} offen sc1
            s_add_u32 s{sT+2}, s{sT+2}, 0x80000
            v_lshlrev_b32 v16, 16, v120
            v_and_b32 v17, s{sHI}, v120
            v_lshlrev_b32 v18, 16, v121
            v_and_b32 v19, s{sHI}, v121
            v_mul_f32 v20, v16, v16
            v_mul_f32 v21, v17, v17
            v_mul_f32 v22, v18, v18
            v_mul_f32 v23, v19, v19
            v_permlane32_swap_b32 v16, v18
            v_permlane32_swap_b32 v17, v19
            v_permlane32_swap_b32 v20, v22
            v_permlane32_swap_b32 v21, v23
            v_add_f32 v16, v16, v18
            v_add_f32 v17, v17, v19
            v_add_f32 v20, v20, v22
            v_add_f32 v21, v21, v23
            v_permlane16_swap_b32 v16, v17
            v_permlane16_swap_b32 v20, v21
            v_add_f32 v16, v16, v17
            v_add_f32 v20, v20, v21
            v_add_f32_dpp v16, v16, v16 row_ror:8 row_mask:0xf bank_mask:0xf
            v_add_f32_dpp v16, v20, v20 row_ror:8 row_mask:0xf bank_mask:0xc
            v_add_f32_dpp v16, v16, v16 row_half_mirror row_mask:0xf bank_mask:0xf
            v_add_f32_dpp v16, v16, v16 quad_perm:[2,3,0,1] row_mask:0xf bank_mask:0xf
            v_add_f32_dpp v122, v16, v16 quad_perm:[1,0,3,2] row_mask:0xf bank_mask:0xf
            buffer_store_dword v122, v8, {WS}, s{sT+3} offen sc1
            s_add_u32 s{sT+3}, s{sT+3}, 4096""")
        else:
            p(f"buffer_store_dwordx2 v[120:121], v8, s[{sOUT}:{sOUT+3}], s{sT+2} offen\ns_add_u32 s{sT+2}, s{sT+2}, 0x80000")
prologue(); p_loads(); p_idx(); p_stats(); stamp('stats done'); p_weights(); arrive(0); stamp('arrived0'); kgen(); stamp('kgen done'); waitbar(0); stamp('bar0')
k=1
for layer in range(2):
    conv(layer,load_weights() if layer==0 else None); stamp(f'conv{layer} done')
    arrive(k)
    if layer==0: colsum()
    waitbar(k); k+=1; stamp('bar')
    g1(layer); stamp(f'g1_{layer} done')
    arrive(k); rcomp(); waitbar(k); k+=1; stamp('bar')
    g2(layer); stamp(f'g2_{layer} done')
    if layer==0: arrive(k); waitbar(k); k+=1; stamp('bar')
p("s_waitcnt vmcnt(0)"); stamp('end')
p("Lend:\ns_endpgm\nLcodeend:")
out=finalize(p)
ref=open(f'cdna_kernels/{NAME}.s.ref').read().split('\n')
hdr=[l for l in ref if l.startswith(';') and '@launch' not in l and 'Override' not in l and 'Harness parses' not in l]
txt='\n'.join(hdr)+f"""
; Generated by a script of mine (persistent kernel: prep | conv | ffn1 | ffn2 | conv | ffn1 | ffn2).
; @launch grid=(256,1,1) block=(256,1,1) lds={LDSN}
.amdgcn_target "amdgcn-amd-amdhsa--gfx950"
.text
.globl {NAME}_kernel
.p2align 8
.type {NAME}_kernel,@function
.set CODESZ, Lcodeend-{NAME}_kernel-64
{NAME}_kernel:
"""+'\n'.join(('' if i.kind=='label' else '  ')+i.text for i in out)+f"""
.section .rodata,"a"
.p2align 6
.amdhsa_kernel {NAME}_kernel
  .amdhsa_next_free_vgpr 512
  .amdhsa_next_free_sgpr 102
  .amdhsa_accum_offset 256
  .amdhsa_group_segment_fixed_size 0
  .amdhsa_kernarg_size 104
  .amdhsa_user_sgpr_count 2
  .amdhsa_user_sgpr_kernarg_segment_ptr 1
  .amdhsa_system_sgpr_workgroup_id_x 1
.end_amdhsa_kernel
"""
open(sys.argv[1],'w').write(txt)
print(len(out),'instrs',file=sys.stderr)
```

```python
import re
REG=re.compile(r'^-?\|?(?:abs\()?([vas])(?:(\d+)|\[(\d+):(\d+)\])\)?\|?$')
TRANS=('v_exp_f32','v_log_f32','v_rcp_f32','v_rsq_f32','v_sqrt_f32','v_sin_f32','v_cos_f32')
def regs_of(op):
    op=op.strip()
    if op in('vcc',): return {'vcc'}
    if op in('exec',): return {'exec'}
    if op=='m0': return {'m0'}
    m=REG.match(op)
    if not m: return set()
    k=m.group(1)
    if m.group(2) is not None: return {k+m.group(2)}
    return {k+str(i) for i in range(int(m.group(3)),int(m.group(4))+1)}
class I:
    __slots__=('text','mn','ops','rd','wr','kind','passes','mods','A','B','C','wide','tag')
    def __init__(s,text,tag=None):
        s.text=text; s.tag=tag
        t=text.split(';')[0].strip()
        s.rd=set(); s.wr=set(); s.kind='other'; s.passes=0; s.A=s.B=s.C=set(); s.wide=set()
        if t.endswith(':') or t.startswith('.') or not t:
            s.mn=t; s.ops=[]; s.mods=''; s.kind='label' if t.endswith(':') else 'dir'; return
        p=t.split(None,1); s.mn=mn=p[0]; rest=p[1] if len(p)>1 else ''
        ops=[];cur='';d=0
        for ch in rest:
            if ch in'[(': d+=1
            if ch in'])': d-=1
            if ch==',' and d==0: ops.append(cur.strip());cur=''
            else: cur+=ch
        if cur.strip(): ops.append(cur.strip())
        mods=''
        if ops:
            l=ops[-1].split(None,1)
            if len(l)>1: ops[-1]=l[0]; mods=l[1]
        s.ops=ops; s.mods=mods
        R=[regs_of(o) for o in ops]
        U=lambda xs:set().union(*xs) if xs else set()
        if mn.startswith('v_mfma'):
            s.kind='mfma'; s.wr=R[0]; s.A=R[1]; s.B=R[2]; s.C=R[3]; s.rd=U(R[1:])
            s.passes=8 if '32x32' in mn else 4
        elif mn.startswith('v_'):
            s.kind='valu'; s.wr=R[0]; s.rd=U(R[1:])
            if 'permlane' in mn and 'swap' in mn: s.wr=U(R[:2]); s.rd=U(R[:2])
            if mn.startswith(('v_fmac','v_pk_fmac','v_dot2c','v_writelane')) or '_dpp' in mn or 'op_sel:[0,0,1]' in mods or '_sdwa' in mn: s.rd=s.rd|R[0]
            if mn.startswith(('v_add_co','v_sub_co','v_addc_co')): s.wr=U(R[:2]); s.rd=U(R[2:])
        elif mn.startswith(('buffer_load','global_load')):
            s.kind='vmem'
            if ' lds' in ' '+mods or 'load_lds' in mn: s.rd=U(R)|{'m0'}
            else:
                s.wr=R[0]; s.rd=U(R[1:])
                if 'd16' in mn: s.rd=s.rd|R[0]
        elif mn.startswith(('buffer_store','global_store','buffer_atomic','global_atomic')):
            s.kind='vmem'; s.rd=U(R)
            if 'x4' in mn or 'x3' in mn: s.wide=R[0] if mn.startswith('buffer') else R[1]
            if 'atomic' in mn and 'sc0' in mods: s.wr=R[0]
        elif mn.startswith('ds_'):
            s.kind='lds'
            if mn.startswith(('ds_read','ds_bpermute','ds_permute','ds_swizzle')):
                s.wr=R[0]; s.rd=U(R[1:])
                if 'd16' in mn: s.rd=s.rd|R[0]
            else: s.rd=U(R)
        elif mn.startswith(('s_load','s_memtime','s_memrealtime','s_buffer_load')):
            s.kind='smem'; s.wr=R[0]; s.rd=U(R[1:])
        elif mn.startswith('s_'):
            s.kind='salu'
            if mn.startswith(('s_cbranch','s_branch')):
                s.kind='branch'
                if 'vcc' in mn: s.rd={'vcc'}
            elif mn.startswith(('s_cmp','s_bitcmp','s_waitcnt','s_nop','s_barrier','s_endpgm','s_setprio','s_sleep')): s.rd=U(R)
            else:
                s.wr=R[0]; s.rd=U(R[1:])
                if 'saveexec' in mn: s.wr=s.wr|{'exec'}
                if mn.startswith(('s_addk','s_mulk')): s.rd=s.rd|R[0]
    def states(s):
        if s.kind in('label','dir'): return 0
        if s.mn=='s_nop': return int(s.ops[0])+1
        return 1
def isv(r): return r[0] in'va' and r!='vcc'
def iss(r): return r[0]=='s' or r=='vcc'
def need_states(p,c):
    n=0
    if p.kind=='valu':
        vw={r for r in p.wr if isv(r)}; sw={r for r in p.wr if iss(r)}
        if vw&c.rd:
            if c.kind=='mfma': n=max(n,2)
            if c.kind=='valu':
                if '_dpp' in c.mn or 'permlane' in c.mn: n=max(n,2)
                if c.mn.startswith(('v_readlane','v_readfirstlane')): n=max(n,1)
                if p.mn.startswith(TRANS): n=max(n,1)
                if '_sdwa' in p.mn or 'op_sel' in p.mods and not p.mn.startswith('v_pk'): n=max(n,1)
        if sw&c.rd:
            if c.kind=='vmem': n=max(n,5)
            if c.kind=='valu': n=max(n,4 if c.mn.startswith(('v_readlane','v_writelane')) else 2)
            if c.kind in('salu','smem','branch'): n=max(n,1)
    elif p.kind=='mfma':
        big=p.passes==8
        if c.kind=='mfma':
            if p.wr&(c.A|c.B): n=max(n,12 if big else 8)
            if p.wr&c.C and not(p.wr==c.C and p.passes==c.passes): n=max(n,10 if big else 6)
            if p.wr&c.wr and not(p.wr==c.wr and p.wr==c.C): n=max(n,10 if big else 6)
        elif c.kind in('valu','vmem','lds'):
            if p.wr&(c.rd|c.wr): n=max(n,12 if big else 8)
            if p.C&c.wr: n=max(n,7 if big else 3)
    elif p.kind=='vmem':
        if p.wide&c.wr: n=max(n,2)
    elif p.kind=='salu':
        if 'm0' in p.wr and 'm0' in c.rd and c.kind in('vmem','lds'): n=max(n,1)
    if p.kind in('vmem','lds') and c.kind=='valu' and '_dpp' in c.mn: pass
    return n
WC=re.compile(r'(vmcnt|lgkmcnt)\((\d+)\)')
def finalize(ins,MERGE=14):
    out=[]; vm=[]; lg=[]; lgpos={}
    def emit(i):
        need=0; dist=0
        for p in reversed(out):
            if dist>=12: break
            n=need_states(p,i)
            if n-dist>need: need=n-dist
            dist+=p.states()
        while need>0:
            k=min(need,16); out.append(I('s_nop %d'%(k-1))); need-=k
        out.append(i)
    for i in ins:
        if i.kind=='dir' and i.text.startswith('.!reset'):
            vm=[];lg=[]; continue
        if i.kind=='dir' and i.text.startswith('.!ldswr'):
            k=max([n for n,q in enumerate(lg) if q.kind=='smem' or not q.wr],default=None)
            if k is not None:
                n=0 if any(q.kind=='smem' for q in lg) else min(len(lg)-1-k,15)
                lg=lg[len(lg)-n:] if n else []
                emit(I('s_waitcnt lgkmcnt(%d)'%n))
            continue
        if i.kind=='dir' and i.text.startswith('.!vmtag'):
            tg=i.text.split()[1]
            k=max([n for n,q in enumerate(vm) if q.tag==tg],default=None)
            if k is not None:
                n=min(len(vm)-1-k,63); vm=vm[len(vm)-n:] if n else []
                emit(I('s_waitcnt vmcnt(%d)'%n))
            continue
        if i.kind in('label','dir'): out.append(i); continue
        if i.mn=='s_waitcnt':
            for k,n in WC.findall(i.text):
                n=int(n)
                if k=='vmcnt': vm=vm[len(vm)-n:] if n<len(vm) and n>0 else ([] if n==0 else vm)
                else: lg=lg[len(lg)-n:] if n<len(lg) and n>0 else ([] if n==0 else lg)
            emit(i); continue
        touch=i.rd|i.wr
        wv=wl=None
        for k,(p) in enumerate(vm):
            if p.wr&touch and not(i.kind=='vmem' and not(p.wr&i.rd) and False): wv=len(vm)-1-k
        anysm=any(p.kind=='smem' for p in lg)
        for k,p in enumerate(lg):
            if p.wr&touch:
                if i.kind=='lds' and p.kind=='lds' and not(p.wr&(i.rd-(i.wr if 'd16' in i.mn else set()))): continue
                wl=0 if anysm else len(lg)-1-k
        if wv is not None or wl is not None:
            parts=[]
            if wv is not None:
                wv=min(wv,63); parts.append('vmcnt(%d)'%wv); vm=vm[len(vm)-wv:] if wv else []
            if wl is not None:
                while wl>0 and len(out)-lgpos[id(lg[len(lg)-wl])]>=MERGE: wl-=1
                wl=min(wl,15); parts.append('lgkmcnt(%d)'%wl); lg=lg[len(lg)-wl:] if wl else []
            emit(I('s_waitcnt '+' '.join(parts)))
        emit(i)
        if i.kind=='vmem': vm.append(i)
        elif i.kind in('lds','smem'): lg.append(i); lgpos[id(i)]=len(out)
    return out
class P(list):
    def __call__(s,text,tag=None):
        for l in text.strip().split('\n'):
            l=l.strip()
            if l: s.append(I(l,tag))
        return s
def v(a,n=1): return 'v%d'%a if n==1 else 'v[%d:%d]'%(a,a+n-1)
def a(x,n=1): return 'a%d'%x if n==1 else 'a[%d:%d]'%(x,x+n-1)
def s(x,n=1): return 's%d'%x if n==1 else 's[%d:%d]'%(x,x+n-1)
def interleave(main,side,start=0,per=1,every=1):
    out=P(); side=list(side); k=0; m=0
    for i in main:
        out.append(i)
        if i.kind=='mfma':
            m+=1
            if m>start and (m-start)%every==0:
                for _ in range(per):
                    if k<len(side): out.append(side[k]); k+=1
    out.extend(side[k:])
    return out


class Mark(I):
    def __init__(s,what,*n):
        s.text='.!'+what; s.kind='mark'; s.mn=what; s.ops=list(n); s.rd=set(); s.wr=set(); s.mods=''; s.tag=None; s.passes=0; s.A=s.B=s.C=s.wide=set()
def gap(l,n): l.append(Mark('gap',n))
def at(l,name,off=0): l.append(Mark('at',name,off))
def done(l,tag): l.append(Mark('done',tag))
def after(l,tag): l.append(Mark('after',tag))
def need(l,tag): l.append(Mark('need',tag))
def pos(l,name): l.append(Mark('pos',name))
def rate(l,r): l.append(Mark('rate',r))
def cost(i):
    if i.kind=='valu':
        if i.mn.startswith(TRANS) or 'permlane' in i.mn: return 2
        return 1
    if i.kind=='lds': return 3 if 'write_b128' in i.mn else (2 if 'write' in i.mn else 1)
    if i.kind=='vmem': return 2
    if i.kind in('label','mark'): return 0
    if i.kind=='branch': return 1
    return 0.5
def weave(main,sides,log=None,PRI=3):
    POS={}; n=0
    for i in main:
        if i.kind=='mfma': n+=1
        elif i.kind=='mark' and i.mn=='pos': POS[i.ops[0]]=n
    out=P(); S=[list(x) for x in sides]; hold=[0]*len(S); fin=set(); g=[0]; R=[1.0]
    def owner(tag):
        for k,sd in enumerate(S):
            if any(i.kind=='mark' and i.mn=='done' and i.ops[0]==tag for i in sd): return k
        raise Exception('no producer for '+tag)
    def pop(k):
        i=S[k].pop(0); out.append(i)
        while i.tag=='glue':
            i=S[k].pop(0); out.append(i)
    def force(tag):
        if tag in fin: return
        k=owner(tag); c=0
        while tag not in fin:
            i=S[k][0]
            if i.kind=='mark':
                S[k].pop(0)
                if i.mn=='done': fin.add(i.ops[0])
                elif i.mn=='after': force(i.ops[0])
                elif i.mn=='at' and len(i.ops)>2 and POS[i.ops[0]]+i.ops[1]>g[0]: raise Exception(f'hard at violated {i.ops} forcing {tag} at {g[0]}')
            else: pop(k); c+=1
        hold[k]=0
        if log is not None and c: log.append(f'forced {c} instrs for {tag} at mfma {g[0]}')
    def ready(k):
        sd=S[k]
        while sd and sd[0].kind=='mark':
            m=sd[0]
            if m.mn=='gap': hold[k]=g[0]+m.ops[0]
            elif m.mn=='at':
                if POS[m.ops[0]]+m.ops[1]>g[0]: return False
            elif m.mn=='done': fin.add(m.ops[0])
            elif m.mn=='after':
                if m.ops[0] not in fin: return False
            sd.pop(0)
        return bool(sd) and g[0]>=hold[k]
    credit=0.0; idx=0; L=list(main)
    while idx<len(L):
        i=L[idx]; idx+=1
        if i.kind=='mark':
            if i.mn=='need': force(i.ops[0])
            elif i.mn=='rate': R[0]=i.ops[0]
            continue
        out.append(i)
        if i.kind!='mfma': continue
        g[0]+=1
        cap=2*R[0]+credit; nmem=0; sawv=False
        while idx<len(L) and (L[idx].kind in('lds','vmem') or (L[idx].kind=='mark' and L[idx].mn in('pos','rate'))):
            if L[idx].kind=='mark':
                if L[idx].mn=='rate': R[0]=L[idx].ops[0]
            else: out.append(L[idx]); cap-=cost(L[idx]); nmem+=1
            idx+=1
        j=idx
        while j<len(L) and L[j].kind!='mfma': cap-=cost(L[j]); j+=1
        prog=True
        while prog and cap>0.01:
            prog=False
            cand=[k for k in range(len(S)) if ready(k)]
            pick=None
            if not sawv and nmem<(1 if R[0]<1.4 else 2):
                for k in cand:
                    if S[k][0].kind in('lds','vmem') and (k==cand[0] or g[0]%PRI==0): pick=k; break
            if pick is None:
                for k in cand:
                    x=S[k][0]
                    if x.kind in('lds','vmem'): continue
                    if cost(x)>cap+0.51 and (sawv or nmem): continue
                    pick=k; break
            if pick is not None:
                x=S[pick][0]; cap-=cost(x)
                if x.kind in('lds','vmem'): nmem+=1
                if x.kind=='valu': sawv=True
                pop(pick); prog=True
        credit=min(cap,0.0)
        for k in range(len(S)): ready(k)
    for k in range(len(S)):
        while S[k]:
            i=S[k][0]
            if i.kind=='mark':
                S[k].pop(0)
                if i.mn=='done': fin.add(i.ops[0])
                elif i.mn=='after': force(i.ops[0])
            else: pop(k)
    return out
def hard_at(l,name,off=0): l.append(Mark('at',name,off,1))

import subprocess,tempfile,os
def align32(ins):
    real=[i for i in ins if i.kind not in('label','dir')]
    def enc(lines):
        src='.amdgcn_target "amdgcn-amd-amdhsa--gfx950"\n.set CODESZ, 40000\n'+'\n'.join(lines)+'\n'
        r=subprocess.run(['llvm-mc','-triple=amdgcn-amd-amdhsa','-mcpu=gfx950','-show-encoding'],input=src,capture_output=True,text=True)
        return r
    r=enc([i.text for i in ins]); assert r.returncode==0,r.stderr[:500]
    sz=[len(m.split(',')) for m in re.findall(r'encoding: \[([^\]]*)\]',r.stdout)]
    assert len(sz)==len(real),(len(sz),len(real))
    def widen(i):
        return i.mn+'_e64 '+i.text.split(None,1)[1]
    can=[i.kind=='valu' and n==4 and not i.mn.startswith(('v_readfirstlane','v_permlane','v_accvgpr')) and not i.mn.endswith(('_e32','_e64')) for i,n in zip(real,sz)]
    INF=10**9; st={0:(0,None)}; hist=[]
    for i,n,c in zip(real,sz,can):
        ns={}
        for off,(cost_,_) in st.items():
            for w in ((0,1) if c else (0,)):
                m=8 if w else n
                k=cost_+(40 if off+m>32 else 0)+w
                o=(off+m)%32
                if o not in ns or k<ns[o][0]: ns[o]=(k,(off,w))
        hist.append(ns); st=ns
    off=min(st,key=lambda o:st[o][0]); tot=st[off][0]; nw=0
    for i,h in zip(reversed(real),reversed(hist)):
        po,w=h[off][1]
        if w: i.text=widen(i); nw+=1
        off=po
    return nw,tot//40
```

```python
import sys,struct,os,json,re
from asmlib import *
NAME='interleave_layers__ssm_conv_s4d__dense_activation_relu__prompt'
STAMP=('stamp' in sys.argv); CLK='s_memtime' if 'cyc' in sys.argv else 's_memrealtime'
CFG=dict(xld=[[100,150,200,232],[84,140,176,212]],xst=[[160,214,266,318],[126,170,220,270]],h0=('G1_3',0),hD=58,hstep=2,n0ld=('G2_3',4),n0=('G2_3',40),
  nld=[None,6,50,92],n=[None,('K0',28),('K1',16),('K2',8)],rconv=1.5,rg1=1.15,rg2=1.4,dist=8)
for a_ in sys.argv[2:]:
    if '=' in a_: k_,v_=a_.split('=',1); CFG[k_]=eval(v_)
W1F=0x1200000; W2F=0x180000; ST0=0x2E0000; CNT=0x2E4000; STA=0x2F0000
X1=[0x400000,0x600000]; X2=0x800000; H=0xA00000; X0=0x1000000; TS=0x1600000; WSN=0x1700000
OOB=0x7ff00000
XT=0; KC=65536; U=132096; RB=141312; SQ=157696; CSL=SQ+2048; DUM=CSL+768; LDSN=163840
TT=RB; WST=KC
sX,sWS,sOUT,sW,sDBG=8,12,16,20,28
sWV,sRB,sCB,sCP=3,4,5,6
sM1,sM2,sM3=60,62,64
sD=66; s8F=67; sTS=68; sHI=70; sPL=71; sPH=72; sEPS=73; sSPIN=74; sNEG=75
sA=76; sB=84; sC=90; sST=94; sR=96; sCK=98; sCK2=100
sXS,sXL,sHS,sHS2,sHL,sX2S,sSTA,sOB,sX2L,sW1,sW2,sPZ=32,33,24,25,26,27,46,47,7,34,35,36
sPZ2=69; sPZ=69; sMC=38
sT=sA
vGF,vHS,vW,vT16,vL16,vL8,vRR,vRES,vST,vSQ,vR,vSTP=range(12)
tA=12; tB=22
ACC=[24,40]; HBUF=[56,100]
vCA,vCB,vNU,vER,vXS,vXL,vD,vSL=range(56,64)
LAND=68; BASE=88; ONES=92
TACC=[24,28,32,36,100,104,108,112]
POOL=[92,96,116,120,124,128,132,136,140]; POOL2=[40,44,48,52]
F=[116,120,124,128]; vCS=132
STG=[24,68,100,84]
def W1(ks,t): return a(ks*12+t*4,4)
def W2(ks,t):
    f=ks*4+t
    return a(192+f*4,4) if f<16 else v(144+(f-16)*4,4)
WS=f"s[{sWS}:{sWS+3}]"
fl=lambda x:hex(struct.unpack('<I',struct.pack('<f',x))[0])
stubs=P(); nst=[0]; lab=[0]
def newlab(n): lab[0]+=1; return f"L{n}{lab[0]}"
def stamp(l,name):
    if not STAMP: return
    if name not in('start','end') and not re.match(CFG.get('st','$^'),name): return
    k=nst[0]; nst[0]+=1; assert k<28
    l(f"{CLK} s[{sST}:{sST+1}]",'glue'); l(f"v_writelane_b32 v{vSTP}, s{sST}, {k} ; stamp {k} {name}")
def bar(l): l(".!ldswr",'glue'); l("s_barrier")
nrt=[28]
def retry(l,loads,check,branch,pre='',name='?'):
    R=newlab('retry'); B=newlab('back')
    l(check)
    if pre: l(pre,'glue')
    l(f"{branch} {R}",'glue'); l(f"{B}:")
    stubs(f".!reset\n{R}:\ns_nop 7\ns_sub_u32 s{sSPIN}, s{sSPIN}, 1\ns_cbranch_scc1 Lbail")
    if STAMP:
        k=nrt[0]; nrt[0]+=1; assert k<64
        stubs(f"v_readlane_b32 s{sR}, v{vSTP}, {k}\ns_add_u32 s{sR}, s{sR}, 1\nv_writelane_b32 v{vSTP}, s{sR}, {k}")
    stubs(loads(sR)); stubs("s_waitcnt vmcnt(0)"); stubs(check)
    if pre: stubs(pre)
    stubs(f"{branch} {R}\ns_nop 4\ns_branch {B}")
def srd(l,d,lo,n):
    l(f"s_mov_b32 s{d}, s{lo}\ns_and_b32 s{d+1}, s{lo+1}, 0xffff\ns_mov_b32 s{d+2}, {hex(n)}\ns_mov_b32 s{d+3}, 0x20000")
def bfround(l,d,sx): l(f"v_cvt_pk_bf16_f32 v{d}, v{sx}, v{sx}\nv_and_b32 v{d}, s{sHI}, v{d}")
def sprinkle(l,extra,every,start=0):
    out=P(); e=list(extra); c=0
    for i in l:
        out.append(i); c+=1
        if e and c>=start and (c-start)%every==0 and i.tag!='glue':
            x=e.pop(0); out.append(x)
            while x.tag=='glue': x=e.pop(0); out.append(x)
    out.extend(e); return out
vTID,vLANE=64,65
vROW=24; vPAR=32; vWL=40; vIDX=100; vPZ=116; vFL=120; vXG=124
def conv_addr(l,st,t0,t1,t2,layer):
    l(f"""s_lshr_b32 s{st}, s{sWV}, 1
    s_and_b32 s{st+1}, s{sWV}, 1
    s_lshl_b32 s{st+1}, s{st+1}, 8
    s_mul_i32 s{st+2}, s{st}, 33280
    s_add_u32 s{st+2}, s{st+2}, s{st+1}
    s_add_u32 s{st+2}, s{st+2}, {KC+48}
    s_mul_i32 s{st}, s{st}, 4608
    s_sub_u32 s{st}, s{st}, s{st+1}
    s_add_u32 s{st}, s{st}, {U+288}
    v_bfe_u32 v{t0}, v{vT16}, 4, 1
    v_lshrrev_b32 v{t1}, 5, v{vT16}
    v_lshlrev_b32 v{vXL}, 9, v{t1}
    v_lshl_add_u32 v{vXL}, v{t0}, 3, v{vXL}
    v_lshlrev_b32 v{vSL}, 1, v{vT16}
    v_mul_u32_u24 v{vNU}, 4608, v{t0}
    v_lshl_add_u32 v{vNU}, v{t1}, 3, v{vNU}
    v_add_u32 v{vNU}, {U+512}, v{vNU}
    v_lshlrev_b32 v{t2}, 4, v{t0}
    v_sub_u32 v{t2}, 16, v{t2}
    v_lshlrev_b32_e64 v{vD}, v{t2}, s{sD}
    v_and_b32 v{vD}, s{sHI}, v{vD}""")
    done(l,f'addrN{layer}')
    l(f"""v_and_b32 v{t1}, 3, v{t1}
    v_lshrrev_b32 v{t2}, 7, v{vT16}
    v_lshlrev_b32 v{vXS}, 14, v{t2}
    v_lshl_add_u32 v{vXS}, v{t0}, 5, v{vXS}
    v_lshl_add_u32 v{vXS}, v{t1}, 3, v{vXS}
    v_lshlrev_b32 v{vER}, 13, v{t0}
    v_lshl_add_u32 v{vER}, v{t1}, 8, v{vER}
    v_lshlrev_b32 v{t1}, 2, v{t1}
    v_and_b32 v{t0}, 15, v{t2}
    v_xor_b32 v{t0}, v{t0}, v{t1}
    v_lshl_add_u32 v{vER}, v{t0}, 4, v{vER}
    v_lshrrev_b32 v{t2}, 4, v{t2}
    v_lshl_add_u32 v{vER}, v{t2}, 10, v{vER}
    v_add_u32 v{vER}, {RB}, v{vER}
    v_bfe_u32 v{t0}, v{vL8}, 3, 3
    v_mul_u32_u24 v{vCA}, 4160, v{t0}
    v_bfe_u32 v{t0}, v{vL8}, 6, 1
    v_lshrrev_b32 v{t1}, 7, v{vL8}
    v_sub_u32 v{t0}, v{t0}, v{t1}
    v_lshlrev_b32 v{t0}, 4, v{t0}
    v_add3_u32 v{vCA}, v{vCA}, v{t0}, s{st+2}
    v_bfe_u32 v{t0}, v{vL8}, 3, 4
    v_lshlrev_b32 v{t0}, 5, v{t0}
    v_lshlrev_b32 v{t1}, 4, v{t1}
    v_add3_u32 v{vCB}, v{t0}, v{t1}, s{st}""")
    done(l,f'addrC{layer}')
def g2_addr(l,st,t0,t1,layer):
    l(f"""s_lshl_b32 s{st}, s{sCB}, 11
    s_lshl_b32 s{st+1}, s{sWV}, 3
    s_add_u32 s{st}, s{st}, s{st+1}
    s_lshl_b32 s{st+1}, s{sWV}, 6
    v_and_b32 v{t0}, 0xf0, v{vL16}
    v_xor_b32 v{t0}, s{st+1}, v{t0}""")
    if layer==0:
        l(f"""v_lshl_add_u32 v{vRES}, v{vL16}, 1, s{st}
        s_lshl_b32 s{st+1}, s{sWV}, 8
        s_add_u32 s{st+1}, s{st+1}, {RB}
        v_lshrrev_b32 v{t1}, 8, v{vL16}
        v_lshlrev_b32 v{t1}, 10, v{t1}
        v_add3_u32 v{vRR}, v{t0}, v{t1}, s{st+1}
        v_lshrrev_b32 v{t0}, 8, v{vL16}
        v_lshlrev_b32 v{t0}, 4, v{t0}
        v_bfe_u32 v{t1}, v{vL16}, 7, 1
        v_lshl_add_u32 v{t0}, v{t1}, 2, v{t0}
        v_bfe_u32 v{t1}, v{vL16}, 4, 1
        v_lshl_add_u32 v{t0}, v{t1}, 3, v{t0}
        v_mov_b32 v{t1}, {OOB}
        s_mov_b32 s{st}, 0x01030103
        s_mov_b32 s{st+1}, s{st}
        v_cndmask_b32 v{vST}, v{t1}, v{t0}, s[{st}:{st+1}]""")
    else:
        l(f"""v_lshrrev_b32 v{t1}, 6, v{vL16}
        v_lshl_add_u32 v{vRR}, v{t1}, 8, v{t0}
        v_add_u32 v{vRR}, {RB}, v{vRR}
        v_lshlrev_b32 v{vST}, 3, v{t1}
        v_bfe_u32 v{t0}, v{vL16}, 4, 2
        v_lshl_add_u32 v{vST}, v{t0}, 10, v{vST}
        v_and_b32 v{t1}, 3, v{t1}
        v_lshl_add_u32 v{t0}, v{t0}, 2, v{t1}
        v_lshrrev_b32 v{t1}, 8, v{vL16}
        v_lshl_add_u32 v{t0}, v{t1}, 4, v{t0}
        v_lshl_add_u32 v{vRES}, v{t0}, 5, s{st}""")
    done(l,f'addrG{layer}')
def nomarks(l): return P([i for i in l if i.kind!='mark'])
def phaseP():
    p=P()
    p(f"""s_cmp_ge_u32 s2, 256
    s_cbranch_scc1 Lend
    s_load_dwordx16 s[32:47], s[0:1], 0
    s_load_dwordx8 s[48:55], s[0:1], 64
    s_load_dwordx2 s[56:57], s[0:1], 96
    s_getpc_b64 s[58:59]
    v_mov_b32 v{vTID}, v0
    v_lshlrev_b32 v16, 7, v0
    v_min_u32 v16, CODESZ, v16
    global_load_dword v66, v16, s[58:59]
    v_add_u32 v16, 0x8000, v16
    v_min_u32 v16, CODESZ, v16
    global_load_dword v67, v16, s[58:59]
    v_lshrrev_b32 v12, 6, v0
    v_and_b32 v{vLANE}, 63, v0
    v_readfirstlane_b32 s{sWV}, v12
    v_lshlrev_b32 v{vT16}, 4, v0
    v_lshlrev_b32 v{vL16}, 4, v{vLANE}
    v_lshlrev_b32 v{vL8}, 3, v{vLANE}
    s_and_b32 s{sT}, s2, 7
    s_lshr_b32 s{sT+1}, s2, 3
    s_lshl_b32 s{sCP}, s{sT}, 5
    s_add_u32 s{sCP}, s{sCP}, s{sT+1}
    s_and_b32 s{sT+1}, s{sT+1}, 3
    s_lshl_b32 s{sRB}, s{sT}, 2
    s_add_u32 s{sRB}, s{sRB}, s{sT+1}
    s_lshr_b32 s{sCB}, s2, 5
    s_mov_b32 s{sHI}, 0xffff0000
    s_mov_b32 s{sSPIN}, 200000
    s_cmp_eq_u32 s2, 0
    s_cselect_b32 s{sT+4}, 0, {OOB}
    v_mov_b32 v{vPZ}, -1
    v_mov_b32 v{vPZ+1}, -1
    v_mov_b32 v{vPZ+2}, -1
    v_mov_b32 v{vPZ+3}, -1
    v_lshlrev_b32 v14, 6, v0
    v_or_b32 v14, s{sT+4}, v14
    v_mov_b32 v15, 0
    v_mov_b32 v{vSTP}, 0
    s_lshl_b32 s{sPZ2}, s2, 13
    s_lshl_b32 s{sT+1}, s{sWV}, 11
    s_add_u32 s{sT}, s{sPZ2}, s{sT+1}
    s_lshr_b32 s{sT+1}, s{sWV}, 1
    s_lshl_b32 s{sT+1}, s{sT+1}, 12
    s_and_b32 s{sT+2}, s{sWV}, 1
    s_lshl_b32 s{sT+2}, s{sT+2}, 9
    s_add_u32 s{sT+1}, s{sT+1}, s{sT+2}
    s_add_u32 s{sT+1}, s{sT+1}, s{sPZ2}
    v_lshlrev_b32 v13, 2, v{vLANE}
    s_mov_b32 s{sT+5}, {CNT}""")
    stamp(p,'start')
    if CFG.get('tlb',1)==1:
        p(f"""s_lshr_b32 s{sT+6}, s2, 3
        s_lshl_b32 s{sT+6}, s{sT+6}, 2
        s_add_u32 s{sT+6}, s{sT+6}, s{sWV}
        s_mul_i32 s{sT+7}, s{sT+6}, 79
        s_lshr_b32 s{sT+7}, s{sT+7}, 10
        s_mul_i32 s{sT+7}, s{sT+7}, 13
        s_sub_u32 s{sT+6}, s{sT+6}, s{sT+7}
        s_lshl_b32 s{sT+6}, s{sT+6}, 3
        s_load_dwordx2 s[{sCK}:{sCK+1}], s[0:1], s{sT+6}
        s_load_dword s{sCK2}, s[{sCK}:{sCK+1}], 128""")
    srd(p,sX,32,0x200000); srd(p,sWS,56,WSN)
    if CFG.get('tlb',1)==2:
        for n_,b_ in enumerate([32,34,36,38,40,42,48,50,52,54,56]): p(f"s_load_dword s{60+n_ if n_<6 else 70+n_}, s[{b_}:{b_+1}], 128")
    p(f"buffer_store_dword v15, v14, {WS}, s{sT+5} offen sc1",'init')
    p(f"""buffer_load_dwordx4 {v(vROW,4)}, v{vL16}, s[{sX}:{sX+3}], s{sT} offen
    buffer_load_dwordx4 {v(vROW+4,4)}, v{vL16}, s[{sX}:{sX+3}], s{sT} offen offset:1024""")
    for c in range(2):
        for r in range(4): p(f"buffer_load_dword v{vXG+4*c+r}, v13, s[{sX}:{sX+3}], s{sT+1} offen offset:{r*1024+c*256}")
    p(f"""s_lshl_b32 s{sT}, s{sCP}, 9
    v_lshl_add_u32 v12, v{vTID}, 1, s{sT}
    global_load_ushort v{vPAR}, v12, s[34:35]
    global_load_ushort v{vPAR+1}, v12, s[36:37]
    global_load_ushort v{vPAR+2}, v12, s[38:39]
    global_load_ushort v{vPAR+3}, v12, s[40:41]
    v_lshrrev_b32 v12, 7, v12
    v_and_b32 v12, -2, v12
    global_load_ushort v{vPAR+4}, v12, s[42:43]
    s_lshl_b32 s{sT}, s{sCP}, 2
    s_load_dword s{sD}, s[44:45], s{sT}""")
    stamp(p,'p loads1')
    srd(p,sOUT,52,0x200000); srd(p,sDBG,54,256)
    LA=newlab('w2'); LB=newlab('wj'); LC=newlab('w3')
    w=sB
    p(f"""s_and_b32 s{sT}, s{sWV}, 1
    s_lshl_b32 s{sT+1}, s{sRB}, 1
    s_add_u32 s{sT}, s{sT}, s{sT+1}
    s_mul_i32 s{w+1}, s{sWV}, 5120
    s_add_u32 s{w+1}, s{w+1}, {WST}
    s_cmp_ge_u32 s{sWV}, 2
    s_cselect_b32 s{sW}, s50, s48
    s_cselect_b32 s{sW+1}, s51, s49
    s_and_b32 s{sW+1}, s{sW+1}, 0xffff
    s_mov_b32 s{sW+2}, {512*1376*2}
    s_mov_b32 s{sW+3}, 0x20000
    s_cmp_ge_u32 s{sWV}, 2
    s_cbranch_scc1 {LA}
    s_lshr_b32 s{sT+1}, s{sT}, 4
    s_lshl_b32 s{sT+2}, s{sT+1}, 2
    s_xor_b32 s{sT+2}, s{sT+2}, s{sT}
    s_and_b32 s{sT+2}, s{sT+2}, 15
    s_mul_i32 s{sT+2}, s{sT+2}, {32*2752}
    s_mul_i32 s{sT+3}, s{sCB}, 344
    s_add_u32 s{sT+2}, s{sT+2}, s{sT+3}
    s_mul_i32 s{sT+3}, s{sT+1}, 88
    s_add_u32 s{sT+2}, s{sT+2}, s{sT+3}
    s_lshl_b32 s{w}, s{sCB}, 6
    s_add_u32 s{w}, s{w}, s{sT}
    s_mul_i32 s{w}, s{w}, 3072
    s_add_u32 s{w}, s{w}, {W1F}
    s_mov_b32 s{w+7}, {OOB}
    s_mov_b32 s{w+6}, 0
    s_mov_b32 s{w+2}, 0xf000f000
    s_mov_b32 s{w+3}, 0xf000f000
    s_cmp_eq_u32 s{sT+1}, 3
    s_cselect_b32 s{w+4}, 0x0f000f00, 0
    s_mov_b32 s{w+5}, s{w+4}""")
    for i in range(3):
        p(f"""v_add_u32 v20, {64*i}, v{vLANE}
        v_mul_u32_u24 v21, 171, v20
        v_lshrrev_b32 v21, 10, v21
        v_lshlrev_b32 v20, 4, v20
        v_mul_u32_u24 v22, {2752-96}, v21
        v_add3_u32 v{12+i}, v22, v20, s{sT+2}
        v_lshlrev_b32 v22, 6, v21
        v_add3_u32 v{16+i}, v22, v20, s{w+1}""")
    p(f"""v_mov_b32 v15, {OOB}
    v_mov_b32 v19, {DUM}
    s_branch {LB}
    {LA}:
    s_mul_i32 s{sT+1}, s{sT}, 187
    s_lshr_b32 s{sT+1}, s{sT+1}, 11
    s_mul_i32 s{sT+2}, s{sT+1}, 11
    s_sub_u32 s{sT+2}, s{sT}, s{sT+2}
    s_mul_i32 s{w}, s{sCB}, 44
    s_add_u32 s{w}, s{w}, s{sT}
    s_lshl_b32 s{w}, s{w}, 12
    s_add_u32 s{w}, s{w}, {W2F}
    s_cmp_ge_u32 s{sT}, 44
    s_cselect_b32 s{w+7}, {OOB}, 0
    s_mov_b32 s{w+6}, s{w+7}
    s_mov_b64 s[{w+2}:{w+3}], 0
    s_mov_b64 s[{w+4}:{w+5}], 0
    s_mul_i32 s{sT+1}, s{sT+1}, {344*1024}
    s_lshl_b32 s{sT+3}, s{sCB}, 7
    s_add_u32 s{sT+1}, s{sT+1}, s{sT+3}
    v_lshrrev_b32 v20, 3, v{vLANE}
    v_and_b32 v21, 0x70, v{vL16}
    v_mul_u32_u24 v22, 160, v20
    v_add3_u32 v16, v22, v21, s{w+1}
    v_add_u32 v17, 1280, v16
    v_add_u32 v18, 2560, v16
    v_add_u32 v19, 3840, v16
    s_cmp_ge_u32 s{sT+2}, 8
    s_cbranch_scc1 {LC}
    s_lshr_b32 s{sT+3}, s{sT+2}, 2
    s_mul_i32 s{sT+3}, s{sT+3}, {172*1024}
    s_and_b32 s{sT+2}, s{sT+2}, 3
    s_mul_i32 s{sT+2}, s{sT+2}, {44*1024}
    s_add_u32 s{sT+1}, s{sT+1}, s{sT+3}
    s_add_u32 s{sT+1}, s{sT+1}, s{sT+2}
    v_lshlrev_b32 v22, 10, v20
    v_add3_u32 v12, v22, v21, s{sT+1}
    v_add_u32 v13, 0x2000, v12
    v_add_u32 v14, 0x4000, v12
    v_add_u32 v15, 0x6000, v12
    s_branch {LB}
    {LC}:
    s_sub_u32 s{sT+2}, s{sT+2}, 8
    s_lshl_b32 s{sT+2}, s{sT+2}, 3
    v_and_b32 v22, 3, v20
    v_lshlrev_b32 v22, 10, v22
    v_add3_u32 v21, v21, v22, s{sT+1}
    v_lshrrev_b32 v20, 2, v20
    v_add_u32 v20, s{sT+2}, v20
    v_mov_b32 v57, 0x100000""")
    for i in range(4):
        p(f"""v_add_u32 v22, {2*i}, v20
        v_mul_u32_u24 v23, 43, v22
        v_lshrrev_b32 v23, 7, v23
        v_lshrrev_b32 v56, 2, v23
        v_lshl_add_u32 v23, v23, 3, v22
        v_sub_u32 v23, v23, v56
        v_lshl_add_u32 v23, v23, 2, 32
        v_mul_u32_u24 v56, 12, v56
        v_sub_u32 v22, v22, v56
        v_cmp_eq_u32 vcc, 11, v22
        v_cndmask_b32 v23, v23, v57, vcc
        v_lshl_add_u32 v{12+i}, v23, 10, v21""")
    p(f"{LB}:")
    for i in range(4): p(f"buffer_load_dwordx4 {v(vWL+4*i,4)}, v{12+i}, s[{sW}:{sW+3}], 0 offen")
    stamp(p,'p loads2')
    def poison(l,base,n,mul):
        l(f"s_mul_i32 s{sT+3}, s2, {mul}",'glue'); l(f"s_add_u32 s{sT+3}, s{sT+3}, {base}",'glue')
        for i in range(n):
            if i: l(f"s_add_u32 s{sT+3}, s{sT+3}, 4096",'glue')
            l(f"buffer_store_dwordx4 {v(vPZ,4)}, v{vT16}, {WS}, s{sT+3} offen sc1",'pz')
    def poisonB(l):
        poison(l,H,6,24576); poison(l,X2,2,8192)
        l(f"""v_mov_b32 v{vFL+2}, 0
        v_lshlrev_b32 v{vFL+1}, 2, v{vTID}
        v_mov_b32 v{vFL+3}, {OOB}
        v_cmp_gt_u32 vcc, 32, v{vTID}
        v_cndmask_b32 v{vFL+1}, v{vFL+3}, v{vFL+1}, vcc
        s_lshl_b32 s{sT+3}, s2, 7
        s_add_u32 s{sT+3}, s{sT+3}, {STA}""",'glue')
        l(f"buffer_store_dword v{vFL+2}, v{vFL+1}, {WS}, s{sT+3} offen sc1",'pz')
    p(f"""v_mov_b32 v12, 1
    v_lshlrev_b32 v13, 12, v{vLANE}
    v_or_b32 v13, s{sT+4}, v13
    s_lshl_b32 s{sT}, s{sWV}, 2
    .!vmtag init
    buffer_store_dword v12, v13, s[{sDBG}:{sDBG+3}], s{sT} offen sc1""")
    poison(p,X1[0],2,8192)
    if CFG.get('pz',0)==0: poisonB(p)
    stamp(p,'p poison')
    p(f"""s_mov_b32 s{sPL}, 0x05040100
    s_mov_b32 s{sPH}, 0x07060302
    s_mov_b32 s{sEPS}, 0x3727c5ac
    s_mov_b32 s{sNEG}, 0x80008000
    s_mov_b32 s{s8F}, 0x41000000
    s_mov_b32 s{sM1}, 0x22222222
    s_mov_b32 s{sM1+1}, 0x22222222
    s_mov_b32 s{sM2}, 0x44444444
    s_mov_b32 s{sM2+1}, 0x44444444
    s_mov_b32 s{sM3}, 0x88888888
    s_mov_b32 s{sM3+1}, 0x88888888
    s_mov_b32 s{sMC}, 0x00020002
    s_mov_b32 s{sMC+1}, 0x00020002
    s_lshl_b32 s{sTS}, s2, 2
    s_add_u32 s{sTS}, s{sTS}, s{sWV}
    s_lshl_b32 s{sTS}, s{sTS}, 8
    s_add_u32 s{sTS}, s{sTS}, {TS}
    s_lshl_b32 s{sXS}, s{sCP}, 6
    s_lshl_b32 s{sXL}, s{sRB}, 14
    s_and_b32 s{sX2L}, s{sCP}, 31
    s_lshl_b32 s{sX2L}, s{sX2L}, 4
    s_lshr_b32 s{sT}, s{sCP}, 5
    s_lshl_b32 s{sT}, s{sT}, 18
    s_add_u32 s{sX2L}, s{sX2L}, s{sT}
    s_lshl_b32 s{sT}, s{sRB}, 4
    s_add_u32 s{sHL}, s{sT}, s{sWV}
    s_mul_i32 s{sHL}, s{sHL}, 11264
    s_add_u32 s{sHL}, s{sHL}, {H}
    s_lshr_b32 s{sT+1}, s{sCB}, 1
    s_add_u32 s{sT}, s{sT}, s{sT+1}
    s_mul_i32 s{sT}, s{sT}, 11264
    s_add_u32 s{sT}, s{sT}, {H}
    s_and_b32 s{sT+1}, s{sCB}, 1
    s_lshl_b32 s{sT+1}, s{sT+1}, 2
    s_add_u32 s{sT+1}, s{sT+1}, s{sWV}
    s_lshl_b32 s{sHS}, s{sT+1}, 10
    s_add_u32 s{sHS}, s{sHS}, s{sT}
    s_mul_i32 s{sHS2}, s{sT+1}, 384
    s_add_u32 s{sHS2}, s{sHS2}, s{sT}
    s_add_u32 s{sHS2}, s{sHS2}, 8192
    s_lshl_b32 s{sT}, s{sRB}, 2
    s_add_u32 s{sT}, s{sT}, s{sWV}
    s_lshl_b32 s{sSTA}, s{sT}, 6
    s_add_u32 s{sSTA}, s{sSTA}, {STA}
    s_lshl_b32 s{sX2S}, s{sT}, 9
    s_lshl_b32 s{sT}, s{sT}, 12
    s_lshl_b32 s{sT+1}, s{sCB}, 7
    s_add_u32 s{sOB}, s{sT}, s{sT+1}
    s_lshl_b32 s{sT+1}, s{sCB}, 18
    s_add_u32 s{sX2S}, s{sX2S}, s{sT+1}
    s_add_u32 s{sX2S}, s{sX2S}, {X2}
    s_lshl_b32 s{sT}, s{sCB}, 2
    s_add_u32 s{sT}, s{sT}, s{sWV}
    s_mul_i32 s{sW1}, s{sT}, {48*1024}
    s_add_u32 s{sW1}, s{sW1}, {W1F}
    s_mul_i32 s{sW2}, s{sT}, {44*1024}
    s_add_u32 s{sW2}, s{sW2}, {W2F}
    s_lshl_b32 s{sT}, s{sWV}, 12
    v_add_u32 v{vGF}, s{sT}, v{vL8}
    s_add_u32 s{sT}, s{sT}, {RB}
    v_lshrrev_b32 v12, 4, v{vLANE}
    v_lshlrev_b32 v13, 6, v12
    v_xor_b32 v13, v{vL16}, v13
    v_add_u32 v{vW}, s{sT}, v13
    v_mov_b32 v13, {OOB}
    v_cmp_gt_u32 vcc, 48, v{vLANE}
    v_cndmask_b32 v{vHS}, v13, v{vL8}, vcc
    v_bfe_u32 v13, v{vLANE}, 2, 2
    v_cmp_eq_u32 vcc, v13, v12
    s_lshl_b32 s{sT}, s{sWV}, 2
    s_add_u32 s{sT}, s{sT}, {SQ}
    v_and_b32 v13, 0xf0, v{vL16}
    v_add_u32 v13, s{sT}, v13
    v_mov_b32 v12, {DUM}
    v_cndmask_b32 v{vSQ}, v12, v13, vcc""")
    l=P(); g2_addr(l,sT,12,13,0); p.extend(nomarks(l))
    p(f"v_lshlrev_b32 v12, 3, v{vTID}\nv_mov_b32 v15, 1023\ns_mov_b32 s{sT}, {TT}")
    for i in range(15):
        d=vIDX+i
        p(f"""v_add_u32 v13, {7-i}, v12
        v_cvt_f32_i32 v14, v13
        v_cvt_pk_bf16_f32 v14, v14, 0
        v_subrev_u32 v14, {0x4300-128}, v14
        v_min_i32 v{d}, 0x80, v13
        v_max_i32 v{d}, v{d}, v14""")
        if i>7: p(f"v_cmp_gt_i32 vcc, 0, v13\nv_cndmask_b32 v{d}, v{d}, v15, vcc")
        p(f"v_lshl_add_u32 v{d}, v{d}, 2, s{sT}")
    p(f"""v_mov_b32 v14, 0
    v_and_b32 v12, 127, v{vTID}
    v_lshrrev_b32 v13, 7, v{vTID}
    v_mul_u32_u24 v13, 4608, v13
    v_lshl_add_u32 v12, v12, 2, v13
    v_add_u32 v12, {U}, v12
    ds_write_b32 v12, v14""")
    ldfl=lambda sr:f"buffer_load_dwordx4 {v(vFL,4)}, off, s[{sDBG}:{sDBG+3}], 0 sc1"
    stamp(p,'p pre done')
    t=72
    for r in range(2):
        for k in range(4):
            p(f"v_lshlrev_b32 v{t+2*k}, 16, v{vROW+4*r+k}\nv_and_b32 v{t+2*k+1}, s{sHI}, v{vROW+4*r+k}")
        S,Q=t+8+r,t+10+r
        p(f"v_add_f32 v{S}, v{t}, v{t+1}\nv_mul_f32 v{Q}, v{t}, v{t}\nv_fmac_f32 v{Q}, v{t+1}, v{t+1}")
        for k in range(2,8): p(f"v_add_f32 v{S}, v{S}, v{t+k}\nv_fmac_f32 v{Q}, v{t+k}, v{t+k}")
    S,Q=t+8,t+10
    p(f"""v_permlane32_swap_b32 v{S}, v{S+1}
    v_permlane32_swap_b32 v{Q}, v{Q+1}
    v_add_f32 v{S}, v{S}, v{S+1}
    v_add_f32 v{Q}, v{Q}, v{Q+1}
    v_lshrrev_b32 v{t+2}, 2, v{vLANE}
    v_permlane16_swap_b32 v{S}, v{Q}
    v_add_f32 v{S}, v{S}, v{Q}
    v_mov_b32 v{t+3}, {OOB}
    v_and_b32 v{t+4}, 31, v{vLANE}
    v_add_f32_dpp v{S}, v{S}, v{S} row_ror:8 row_mask:0xf bank_mask:0xf
    v_cmp_eq_u32 vcc, 0, v{t+4}
    s_lshl_b32 s{sT}, s2, 6
    v_add_f32_dpp v{S}, v{S}, v{S} row_half_mirror row_mask:0xf bank_mask:0xf
    v_cndmask_b32 v{t+2}, v{t+3}, v{t+2}, vcc
    s_lshl_b32 s{sT+1}, s{sWV}, 4
    v_add_f32_dpp v{S}, v{S}, v{S} quad_perm:[2,3,0,1] row_mask:0xf bank_mask:0xf
    s_add_u32 s{sT}, s{sT}, s{sT+1}
    s_add_u32 s{sT}, s{sT}, {ST0}
    v_add_f32_dpp v{S}, v{S}, v{S} quad_perm:[1,0,3,2] row_mask:0xf bank_mask:0xf
    v_mul_f32 v{t}, 0x3b000000, v{S}
    v_mul_f32 v{Q}, 0x3b000000, v{S}
    v_permlane16_swap_b32 v{t}, v{Q}
    v_fma_f32 v{Q}, -v{t}, v{t}, v{Q}
    v_max_f32 v{Q}, 0, v{Q}""")
    bfround(p,Q,Q); p(f"v_add_f32 v{Q}, s{sEPS}, v{Q}"); bfround(p,Q,Q); p(f"v_sqrt_f32 v{Q}, v{Q}"); bfround(p,Q,Q)
    p(f"v_rcp_f32 v{t+1}, v{Q}\nv_min_u32 v{t+1}, -2, v{t+1}")
    p(f"buffer_store_dwordx2 {v(t,2)}, v{t+2}, {WS}, s{sT} offen sc1",'wst')
    p(f"""s_lshr_b32 s{sT}, s{sWV}, 1
    s_lshl_b32 s{sT+1}, s2, 1
    s_add_u32 s{sT}, s{sT}, s{sT+1}
    s_lshl_b32 s{sT}, s{sT}, 9
    s_and_b32 s{sT+1}, s{sWV}, 1
    s_lshl_b32 s{sT+1}, s{sT+1}, 20
    s_add_u32 s{sT}, s{sT}, s{sT+1}
    s_add_u32 s{sT}, s{sT}, {X0}
    s_add_u32 s{sT+1}, s{sT}, 0x80000
    v_lshrrev_b32 v12, 5, v{vLANE}
    v_and_b32 v13, 0x1f0, v{vL16}
    v_lshl_add_u32 v12, v12, 18, v13""")
    for c in range(2):
        g=vXG+4*c; d=76+4*c
        p(f"""v_perm_b32 v{d}, v{g+1}, v{g}, s{sPL}
        v_perm_b32 v{d+1}, v{g+3}, v{g+2}, s{sPL}
        v_perm_b32 v{d+2}, v{g+1}, v{g}, s{sPH}
        v_perm_b32 v{d+3}, v{g+3}, v{g+2}, s{sPH}""")
        p(f"buffer_store_dwordx4 {v(d,4)}, v12, {WS}, s{sT+c} offen sc1",'wst')
    stamp(p,'p stats stored')
    for i in range(4): p(f"ds_write_b128 v{16+i}, {v(vWL+4*i,4)}")
    p(f"""v_lshrrev_b32 v12, 2, v{vLANE}
    v_mul_u32_u24 v12, 160, v12
    v_and_b32 v13, 24, v{vL8}
    v_add3_u32 v12, v12, v13, s{w+1}
    v_mov_b32 v13, 0x3f803f80
    v_or_b32 v14, s{w+6}, v{vL16}
    v_or_b32 v15, s{w+7}, v{vL16}""")
    for tt in range(4):
        for h in range(2): p(f"ds_read_b64_tr_b16 {v(vWL+4*tt+2*h,2)}, v12 offset:{tt*32+h*2560}")
    k=P()
    lA,Ai,Cr,Ci,ld=[vPAR+i for i in range(5)]
    for r in (lA,Ai,Cr,Ci,ld): k(f"v_lshlrev_b32 v{r}, 16, v{r}")
    k(f"v_mul_f32 v{lA}, 0x3fb8aa3b, v{lA}\nv_mul_f32 v{ld}, 0x3fb8aa3b, v{ld}\nv_exp_f32 v{lA}, v{lA}\nv_exp_f32 v{ld}, v{ld}")
    bfround(k,lA,lA); bfround(k,ld,ld)
    k(f"""v_mul_f32 v{lA}, v{lA}, v{ld}
    v_mul_f32 v{Ai}, v{Ai}, v{ld}
    v_add_f32 v{ld}, v{ld}, v{ld}
    v_mul_f32 v{lA}, 0xbfb8aa3b, v{lA}
    v_mul_f32 v{Ai}, 0.15915494, v{Ai}
    v_mul_f32 v{Cr}, v{Cr}, v{ld}
    v_mul_f32 v{Ci}, v{Ci}, v{ld}""")
    p.extend(k)
    for kk in range(4):
        p(f"v_cndmask_b32 v{vWL+8+kk}, v{vWL+8+kk}, v13, s[{w+2}:{w+3}]\nv_cndmask_b32 v{vWL+8+kk}, v{vWL+8+kk}, 0, s[{w+4}:{w+5}]")
    for tt in range(4):
        p(f"buffer_store_dwordx4 {v(vWL+4*tt,4)}, v{15 if tt==3 else 14}, {WS}, s{w} offen offset:{tt*1024} sc1",'wst')
    p(ldfl(0))
    stamp(p,'p weights stored')
    k=P(); Z={}
    for kk,pw in enumerate([1,8,64,128,192,256]):
        d=68+2*kk; Z[pw]=d; e0,e1=12+2*(kk%2),13+2*(kk%2)
        k(f"""v_mul_f32 v{e1}, {fl(pw)}, v{Ai}
        v_mul_f32 v{e0}, {fl(pw)}, v{lA}
        v_fract_f32 v{e1}, v{e1}
        v_exp_f32 v{e0}, v{e0}
        v_cos_f32 v{d}, v{e1}
        v_sin_f32 v{d+1}, v{e1}
        v_mul_f32 v{d}, v{d}, v{e0}
        v_mul_f32 v{d+1}, v{d+1}, v{e0}""")
    k(f"""v_lshrrev_b32 v12, 7, v{vTID}
    v_lshlrev_b32 v12, 15, v12
    v_and_b32 v13, 127, v{vTID}
    v_lshl_add_u32 v12, v13, 5, v12
    v_mov_b32 v14, 1.0
    v_mov_b32 v15, 0""")
    def cmul(d,x,y):
        k(f"""v_pk_mul_f32 {v(d,2)}, {v(x,2)}, {v(y,2)} op_sel_hi:[1,0]
        v_pk_fma_f32 {v(d,2)}, {v(x,2)}, {v(y,2)}, {v(d,2)} op_sel:[1,1,0] op_sel_hi:[0,1,1] neg_lo:[0,1,0]""")
    PK=[40,48]; tv=[16,18,20,22]
    def pack(pk,i,x,y,neg):
        n='-' if neg else ''
        k(f"v_cvt_pk_bf16_f32 v{pk+i}, v{x}, v{y}\nv_cvt_pk_bf16_f32 v{pk+4+i}, {n}v{x+1}, {n}v{y+1}")
    def flush(pk,tile,half): k(f"ds_write_b128 v12, {v(pk,4)} offset:{tile*8192+half*16}\nds_write_b128 v12, {v(pk+4,4)} offset:{tile*8192+4096+half*16}")
    def chain(pk,x0,z,neg,second=None):
        cur=x0
        for i in range(4):
            if i: cmul(tv[0],cur,z); cur=tv[0]
            if i==0 and second is not None: nx=second
            else: cmul(tv[1],cur,z); nx=tv[1]
            pack(pk,i,cur,nx,neg); cur=nx
    for c,x0 in enumerate([14,Z[64],Z[128],Z[192]]):
        chain(PK[c%2],x0,Z[8],0,Z[8] if c==0 else None); flush(PK[c%2],2+(c>>1),c&1)
    chain(PK[0],Cr,Z[1],1); flush(PK[0],0,0)
    z2,z4=24,26; y=[28,30]
    cmul(z2,Z[1],Z[1]); cmul(y[0],Cr,Z[256]); cmul(z4,z2,z2)
    cmul(tv[0],y[0],z2); pack(PK[1],0,y[0],tv[0],1); cmul(tv[1],tv[0],z2); cmul(tv[0],tv[1],z2); pack(PK[1],1,tv[1],tv[0],1)
    cmul(y[1],y[0],Z[256]); cmul(tv[0],y[1],z4); pack(PK[1],2,y[1],tv[0],1)
    cmul(y[0],y[1],Z[256]); cmul(tv[0],y[0],z4); pack(PK[1],3,y[0],tv[0],1); flush(PK[1],0,1)
    cmul(y[1],y[0],Z[256]); cmul(y[0],y[1],Z[256]); pack(PK[0],0,y[1],y[0],1)
    cmul(y[1],y[0],Z[256]); cmul(y[0],y[1],Z[256]); pack(PK[0],1,y[1],y[0],1)
    cmul(y[1],y[0],Z[256]); pack(PK[0],2,y[1],y[1],1); flush(PK[0],1,0)
    ar=P()
    retry(ar,ldfl,f"v_min3_u32 v{vFL}, v{vFL}, v{vFL+1}, v{vFL+2}\nv_min_u32 v{vFL}, v{vFL}, v{vFL+3}\nv_cmp_eq_u32 vcc, 0, v{vFL}","s_cbranch_vccnz",name='ready')
    ar(f"""s_barrier
    v_mov_b32 v{vFL}, 1
    v_lshlrev_b32 v{vFL+1}, 11, v{vTID}
    v_mov_b32 v{vFL+2}, {OOB}
    v_cmp_gt_u32 vcc, 8, v{vTID}
    v_cndmask_b32 v{vFL+1}, v{vFL+2}, v{vFL+1}, vcc
    s_lshr_b32 s{sT+6}, s2, 3
    s_and_b32 s{sT+6}, s{sT+6}, 15
    s_lshl_b32 s{sT+6}, s{sT+6}, 7
    s_add_u32 s{sT+6}, s{sT+6}, {CNT}
    buffer_atomic_add v{vFL}, v{vFL+1}, {WS}, s{sT+6} offen sc1""")
    stamp(ar,'p arrived')
    cut=CFG.get('arr',170)
    p.extend(k[:cut]); p.extend(ar)
    ex=P()
    if CFG.get('pz',0)==1: poisonB(ex)
    p.extend(sprinkle(k[cut:],ex,6,2))
    bar(p)
    stamp(p,'p tables done')
    p(f"""s_and_b32 s{sT+6}, s2, 7
    s_lshl_b32 s{sT+6}, s{sT+6}, 11
    s_add_u32 s{sT+6}, s{sT+6}, {CNT}
    v_and_b32 v{vFL+1}, 15, v{vLANE}
    v_lshlrev_b32 v{vFL+1}, 7, v{vFL+1}
    s_lshr_b32 s{sT}, s{sWV}, 1
    s_lshl_b32 s{sT}, s{sT}, 15
    s_and_b32 s{sT+1}, s{sWV}, 1
    s_lshl_b32 s{sT+2}, s{sT+1}, 13
    v_add_u32 v12, s{sT}, v{vL8}
    v_add_u32 v13, s{sT+2}, v12""")
    m=P(); fr=[16,28,40,68]
    def kld(ks):
        b=fr[ks%4]
        for tt,(ad,of) in enumerate([(12,0),(12,8192),(13,16384)]):
            for h in range(2): m(f"ds_read_b64_tr_b16 {v(b+4*tt+2*h,2)}, v{ad} offset:{of+ks*1024+h*512}")
    kld(0); kld(1)
    for ks in range(8):
        if ks+2<8: kld(ks+2)
        b=fr[ks%4]
        for tt in range(2): m(f"v_mfma_f32_16x16x32_bf16 {v(80+4*tt,4)}, {v(b+4*tt,4)}, {v(b+8,4)}, {'0' if ks==0 else v(80+4*tt,4)}")
    p.extend(m)
    ldc=lambda sr:f"buffer_load_dword v{vFL}, v{vFL+1}, {WS}, s{sT+6} offen sc1"
    p(ldc(0))
    p(f"""s_lshl_b32 s{sT+1}, s{sT+1}, 4
    s_and_b32 s{sT}, s{sWV}, 2
    s_add_u32 s{sT}, s{sT}, {TT}
    v_and_b32 v13, 15, v{vLANE}
    v_lshrrev_b32 v14, 4, v{vLANE}
    v_add_u32 v13, s{sT+1}, v13
    v_max_u32 v15, 1, v14
    v_sub_u32 v15, 4, v15
    v_lshlrev_b32 v15, v15, v13
    v_lshlrev_b32 v16, 2, v14
    v_lshlrev_b32 v17, 7, v14
    v_cmp_gt_u32 vcc, 2, v14
    v_cndmask_b32 v16, v17, v16, vcc
    v_add_u32 v15, v15, v16
    v_lshl_add_u32 v15, v15, 2, s{sT}
    v_cmp_eq_u32 vcc, 3, v14
    v_mov_b32 v16, 8
    v_mov_b32 v18, 0x100
    v_cndmask_b32 v16, v16, v18, vcc
    v_add_u32 v16, v16, v15
    v_add_u32 v17, v17, v13
    v_lshl_add_u32 v17, v17, 2, s{sT}
    v_cmp_eq_u32 vcc, 63, v{vLANE}
    v_cvt_pk_bf16_f32 v80, v80, v81
    v_cvt_pk_bf16_f32 v82, v82, v83
    v_cvt_pk_bf16_f32 v84, v84, v85
    v_cvt_pk_bf16_f32 v86, v86, v87
    v_cndmask_b32 v86, v86, 0, vcc
    ds_write_b16 v15, v80
    ds_write_b16_d16_hi v15, v80 offset:4
    ds_write_b16 v16, v82
    ds_write_b16_d16_hi v16, v82 offset:4
    ds_write_b16 v17, v84 offset:2048
    ds_write_b16_d16_hi v17, v84 offset:{2048+128}
    ds_write_b16 v17, v86 offset:{2048+256}
    ds_write_b16_d16_hi v17, v86 offset:{2048+384}
    v_mov_b32 v12, 0""")
    l=P(); conv_addr(l,sT,18,19,20,0); p.extend(nomarks(l))
    bar(p)
    stamp(p,'p ktable done')
    E=24
    for i in range(15): p(f"ds_read_b32 v{E+i}, v{vIDX+i}")
    p(f"""v_lshrrev_b32 v13, 2, v{vLANE}
    v_mul_u32_u24 v13, 4160, v13
    v_and_b32 v14, 3, v{vLANE}
    v_lshl_add_u32 v13, v14, 2, v13
    v_add_u32 v13, {KC}, v13
    v_add_u32 v14, {KC}, v{vT16}
    ds_write_b32 v13, v12""")
    retry(p,ldc,f"v_cmp_gt_u32 vcc, 16, v{vFL}","s_cbranch_vccnz",name='bar0')
    stamp(p,'p bar0')
    for q in range(4):
        p(f"s_add_u32 s{sT}, s{sX2L}, {X0+q*0x10000}\nbuffer_load_dwordx2 {v(LAND+2*q,2)}, v{vXL}, {WS}, s{sT} offen sc1")
        if q<3: p(ldst0(q)(sT))
    if CFG.get('pz',0)==2: poisonB(p)
    x=P(); q=0
    for ch in range(2):
        sel=sPL if ch==0 else sPH
        for j0 in range(8):
            d=(40,44,48,52,100,104,108,112)[q%8]; q+=1
            for kk in range(4):
                i=7-j0+2*kk
                x(f"v_perm_b32 v{d+kk}, v{E+i+1}, v{E+i}, s{sel}")
            x(f"ds_write_b128 v14, {v(d,4)} offset:{ch*33280+j0*4160+16}")
    wl=w1loads()
    nw=CFG.get('pw',16); cut=[n for n,i in enumerate(wl) if i.kind=='vmem'][nw-1]+1
    p.extend(sprinkle(x,wl[:cut],5,4))
    stamp(p,'p expand done')
    return p,P(wl[cut:])
def ldst0(q): return lambda sr:f"s_mov_b32 s{sr}, {ST0+q*4096}\nbuffer_load_dwordx4 {v(LAND+8+4*(q%3),4)}, v{vT16}, {WS}, s{sr} offen sc1"
def w1loads():
    l=P()
    for f in range(48):
        if f%4==0: l(f"s_add_u32 s{sC}, s{sW1}, {f*1024}",'glue')
        l(f"buffer_load_dwordx4 {W1(f//3,f%3)}, v{vL16}, {WS}, s{sC} offen offset:{(f%4)*1024} sc1")
    return l
def w2loads():
    l=P()
    for f in range(44):
        if f%4==0: l(f"s_add_u32 s{sC}, s{sW2}, {f*1024}",'glue')
        l(f"buffer_load_dwordx4 {W2(f//4,f%4)}, v{vL16}, {WS}, s{sC} offen offset:{(f%4)*1024} sc1")
        gap(l,CFG.get('w2gap',3))
    return l
def sched(out,seq,pool,late,ld,req,dist):
    where={}; free=list(pool); n=len(seq); uses={}; got=set()
    for i,x in enumerate(seq):
        uses.setdefault(x[0],[]).append(i); uses.setdefault(x[1],[]).append(i)
    def nxt(k,i):
        for u in uses[k]:
            if u>=i: return u
        return 10**9
    cnt=[0]
    def fetch(i,limit,horizon):
        c=0
        for j in range(i,min(n,horizon+1)):
            for k in seq[j][:2]:
                if k in where: continue
                if c>=limit: return
                if free: r=free.pop(0)
                else:
                    vic=max(where,key=lambda q:nxt(q,i))
                    if nxt(vic,i)<=j: return
                    r=where.pop(vic)
                t=req(k)
                if t and t not in got: need(out,t); got.add(t)
                where[k]=r; out(ld(k,r)); c+=1; cnt[0]+=1
    fetch(0,6,dist)
    for i,(ka,kb,acc,first,marks) in enumerate(seq):
        for mk in marks: out.append(mk)
        if i==late[0]:
            if late[2]: need(out,late[2])
            free.extend(late[1])
        fetch(i,99,i)
        out(f"v_mfma_f32_16x16x32_bf16 {v(acc,4)}, {v(where[ka],4)}, {v(where[kb],4)}, {'0' if first else v(acc,4)}")
        for k in (ka,kb):
            if k in where and nxt(k,i+1)>=10**9: free.append(where.pop(k))
        fetch(i+1,1,i+1+dist)
    return cnt[0]
def conv_main(m,L):
    seq=[]; seen=set()
    def add(aa,b,r,marks): seq.append((('A',aa,r),('B',b,r),TACC[aa+b],(aa+b) not in seen,marks)); seen.add(aa+b)
    for q in range(4):
        mk=[Mark('pos',f'F{q}{L}')]
        for r in range(4):
            for aa,b in ((0,2*q),(0,2*q+1),(1,2*q)): add(aa,b,r,mk); mk=[]
        mk=[Mark('pos',f'K{q}{L}')]
        if q==3: break
        for r in ((3,2,1,0)):
            add(1,2*q+1,r,mk); mk=[]
            for aa in range(2,8-2*q):
                add(aa,2*q,r,[])
                if aa+2*q+1<8: add(aa,2*q+1,r,[])
    def ld(k,r):
        if k[0]=='A': return f"ds_read_b128 {v(r,4)}, v{vCA} offset:{512*k[1]+64*k[2]}"
        return f"ds_read_b128 {v(r,4)}, v{vCB} offset:{512*k[1]+64*(3-k[2])}"
    rate(m,CFG['rconv']); need(m,f'N0{L}')
    if L: need(m,'addrC1')
    n=sched(m,seq,POOL,(CFG.get('late',10) if L else 0,POOL2,'G2E30' if L else None),ld,lambda k:f'N{k[1]//2}{L}' if k[0]=='B' else None,CFG['dist'])
    pos(m,f'K3{L}'); print('conv reads',n,file=sys.stderr)
def colsum_main(m):
    m(f"v_mov_b32 v{ONES}, 0x3f803f80\nv_mov_b32 v{ONES+1}, 0x3f803f80\nv_mov_b32 v{ONES+2}, 0x3f803f80\nv_mov_b32 v{ONES+3}, 0x3f803f80")
    need(m,'W1')
    for ks in range(16):
        for t in range(3): m(f"v_mfma_f32_16x16x32_bf16 {v(vCS+4*t,4)}, {W1(ks,t)}, {v(ONES,4)}, {'0' if ks==0 else v(vCS+4*t,4)}")
    pos(m,'CSend')
def g1_main(m,L):
    rate(m,CFG['rg1'])
    def ldf(s,h):
        j,ks=divmod(s,16)
        if ks==0 and h==0: need(m,f'S{j}{L}')
        m(f"ds_read_b64_tr_b16 {v(F[s%4]+2*h,2)}, v{vGF} offset:{j*16384+(ks%4)*1024+h*512}")
        if ks%4==3 and h==1: m(f"v_xor_b32 v{vGF}, {(1 if (ks//4)%2==0 else 3)*4096}, v{vGF}")
    for s in range(3): ldf(s,0); ldf(s,1)
    for s in range(64):
        j,ks=divmod(s,16); acc=ACC[j%2]
        if ks==0:
            pos(m,f'G1_{j}{L}')
            if j>=2: need(m,f'G1E{j-2}{L}')
        for t in range(3):
            m(f"v_mfma_f32_16x16x32_bf16 {v(acc+4*t,4)}, {W1(ks,t)}, {v(F[s%4],4)}, {'0' if ks==0 else v(acc+4*t,4)}")
            if t<2 and s+3<64: ldf(s+3,t)
        if ks<4: m(f"v_mfma_f32_16x16x32_bf16 {v(acc+12,4)}, {v(F[s%4],4)}, {v(F[s%4],4)}, {'0' if ks==0 else v(acc+12,4)}")
    pos(m,f'G1_4{L}')
def g2_main(m,L):
    rate(m,CFG['rg2'])
    for j in range(4):
        acc=ACC[j%2]; b=HBUF[j%2]
        pos(m,f'G2_{j}{L}')
        need(m,f'G1E{j+2}{L}' if j<2 else f'G2E{j-2}{L}')
        if L==0 and j==0: need(m,'W2')
        for ks in range(11):
            if ks==0: need(m,f'Ha{j}{L}')
            if ks==6: need(m,f'Hb{j}{L}')
            for t in range(4):
                c='0' if ks==0 else v(acc+4*t,4)
                if L==0: m(f"v_mfma_f32_16x16x32_bf16 {v(acc+4*t,4)}, {v(b+4*ks,4)}, {W2(ks,t)}, {c}")
                else: m(f"v_mfma_f32_16x16x32_bf16 {v(acc+4*t,4)}, {W2(ks,t)}, {v(b+4*ks,4)}, {c}")
    pos(m,f'G2_4{L}')
def ldx2(q):
    s_=q%2
    return lambda sr:f"""s_add_u32 s{sr}, s{sX2L}, {X2+q*0x10000}
    buffer_load_dwordx2 {v(LAND+2*s_,2)}, v{vXL}, {WS}, s{sr} offen sc1
    s_mov_b32 s{sr}, {STA+q*8192}
    buffer_load_dwordx4 {v(LAND+4+8*s_,4)}, v{vSL}, {WS}, s{sr} offen sc1
    buffer_load_dwordx4 {v(LAND+8+8*s_,4)}, v{vSL}, {WS}, s{sr} offen offset:16 sc1"""
def N(A,q,L):
    t=tA
    if L==0:
        xr=LAND+2*q; sb=LAND+8+4*(q%3); ma,ra,mb,rb=sb,sb+1,sb+2,sb+3
    else:
        xr=LAND+2*(q%2); sb=LAND+4+8*(q%2); ma,ra,mb,rb=sb,sb+1,sb+4,sb+5
        retry(A,ldx2(q),f"v_min_f32 v{t}, v{sb+2}, v{sb+6}\nv_cmp_eq_u32 s[{sCK2}:{sCK2+1}], -1, v{xr}\nv_cmp_neq_f32 s[{sCK}:{sCK+1}], s{s8F}, v{t}","s_cbranch_scc1",f"s_or_b64 s[{sCK}:{sCK+1}], s[{sCK}:{sCK+1}], s[{sCK2}:{sCK2+1}]",name=f'N{q}{L}')
        A(f"""v_mul_f32 v{ma}, 0x3b000000, v{ma}
        v_mul_f32 v{mb}, 0x3b000000, v{mb}
        v_mul_f32 v{t}, v{ma}, v{ma}
        v_mul_f32 v{t+1}, v{mb}, v{mb}
        v_fmamk_f32 v{ra}, v{ra}, 0xbb000000, v{t}
        v_fmamk_f32 v{rb}, v{rb}, 0xbb000000, v{t+1}
        v_min_f32 v{ra}, 0, v{ra}
        v_min_f32 v{rb}, 0, v{rb}
        v_sub_f32 v{ra}, s{sEPS}, v{ra}
        v_sub_f32 v{rb}, s{sEPS}, v{rb}
        v_rsq_f32 v{ra}, v{ra}
        v_rsq_f32 v{rb}, v{rb}""")
    A(f"v_lshlrev_b32 v{BASE}, 16, v{xr}\nv_and_b32 v{BASE+1}, s{sHI}, v{xr}\nv_lshlrev_b32 v{BASE+2}, 16, v{xr+1}\nv_and_b32 v{BASE+3}, s{sHI}, v{xr+1}")
    sel=[(ma,ra,'[0,0,2,2]'),(mb,rb,'[0,0,2,2]'),(ma,ra,'[1,1,3,3]'),(mb,rb,'[1,1,3,3]')]
    for e,(m_,r_,qp) in enumerate(sel): A(f"v_subrev_f32_dpp v{t+e}, v{m_}, v{BASE+e} quad_perm:{qp} row_mask:0xf bank_mask:0xf")
    for e,(m_,r_,qp) in enumerate(sel): A(f"v_mul_f32_dpp v{t+e}, v{r_}, v{t+e} quad_perm:{qp} row_mask:0xf bank_mask:0xf")
    done(A,f'Nuse{q}{L}')
    A(f"v_cvt_pk_bf16_f32 v{t+4}, v{t}, v{t+1}\nv_cvt_pk_bf16_f32 v{t+5}, v{t+2}, v{t+3}\nds_write_b64 v{vNU}, {v(t+4,2)} offset:{q*1024}")
    for e in range(4): A(f"v_fmac_f32 v{BASE+e}, v{vD}, v{t+e}")
    bar(A); done(A,f'N{q}{L}'); stamp(A,f'N{q}{L}')
def E(A,q,L):
    t=tA; o=(q%2)*2048
    hard_at(A,f'K{q}{L}'); gap(A,2)
    A(f"ds_write_b128 v{vW}, {v(TACC[2*q],4)} offset:{o}\nds_write_b128 v{vW}, {v(TACC[2*q+1],4)} offset:{o+1024}")
    done(A,f'Ew{q}{L}'); gap(A,2)
    if q==0 and L==0: A(".!vmtag pz")
    bar(A)
    A(f"ds_read_b128 {v(t,4)}, v{vER} offset:{o}\nds_read_b128 {v(t+4,4)}, v{vER} offset:{o+4096}"); gap(A,4)
    for e in range(4): A(f"v_add_f32 v{BASE+e}, v{BASE+e}, v{t+e}")
    for e in range(4): A(f"v_add_f32 v{BASE+e}, v{BASE+e}, v{t+4+e}")
    A(f"""v_cvt_pk_bf16_f32 v{t+8}, v{BASE}, v{BASE+1}
    v_cvt_pk_bf16_f32 v{t+9}, v{BASE+2}, v{BASE+3}
    v_min_u32 v{t+8}, -2, v{t+8}
    s_add_u32 s{sA}, s{sXS}, {X1[L]+q*0x80000}
    buffer_store_dwordx2 {v(t+8,2)}, v{vXS}, {WS}, s{sA} offen sc1""")
    done(A,f'E{q}{L}'); stamp(A,f'E{q}{L}')
def ldx1(j,L):
    def f(sr):
        return '\n'.join(f"s_add_u32 s{sr}, s{sXL}, {X1[L]+j*0x80000+i*4096}\nbuffer_load_dwordx4 {v(STG[j]+4*i,4)}, v{vT16}, {WS}, s{sr} offen sc1" for i in range(4))
    return f
def stage(B,j,L):
    b=STG[j]
    retry(B,ldx1(j,L),f"""v_max3_u32 v{tB}, v{b}, v{b+2}, v{b+4}
    v_max3_u32 v{tB}, v{tB}, v{b+6}, v{b+8}
    v_max3_u32 v{tB}, v{tB}, v{b+10}, v{b+12}
    v_max_u32 v{tB}, v{tB}, v{b+14}
    v_cmp_eq_u32 vcc, -1, v{tB}""","s_cbranch_vccnz",name=f'S{j}{L}')
    for i in range(4): B(f"ds_write_b128 v{vT16}, {v(b+4*i,4)} offset:{j*16384+i*4096}"); gap(B,2)
    bar(B); done(B,f'S{j}{L}'); stamp(B,f'S{j}{L}')
def G1E(A,j,L):
    t=tA; acc=ACC[j%2]
    hard_at(A,f'G1_{j+1}{L}'); gap(A,2)
    sg=0xbb000000 if L==0 else 0x3b000000
    A(f"""v_mul_f32 v{t}, {hex(sg)}, v{acc+8}
    v_mul_f32 v{t+1}, {hex(sg)}, v{acc+8}
    v_cndmask_b32 v{t+8}, v{acc+12}, v{acc+13}, s[{sM1}:{sM1+1}]
    v_permlane32_swap_b32 v{t}, v{t+1}
    v_cndmask_b32 v{t+8}, v{t+8}, v{acc+14}, s[{sM2}:{sM2+1}]
    v_mov_b32 v{t}, v{t+1}
    v_cndmask_b32 v{t+8}, v{t+8}, v{acc+15}, s[{sM3}:{sM3+1}]
    s_add_u32 s{sA}, s{sHS}, {j*4*11264}
    v_permlane16_swap_b32 v{t}, v{t+1}""")
    for k in range(12):
        if L==0: A(f"v_fmac_f32 v{acc+k}, v{t+1}, v{vCS+k}")
        else: A(f"v_fma_f32 v{acc+k}, v{t+1}, v{vCS+k}, -v{acc+k}")
        if k%2:
            A(f"v_cvt_pk_bf16_f32 v{t+2+k//2}, v{acc+k-1}, v{acc+k}")
            A(f"v_pk_max_i16 v{t+2+k//2}, v{t+2+k//2}, 0" if L==0 else f"v_pk_max_u16 v{t+2+k//2}, v{t+2+k//2}, s{sNEG}")
        if k==7: A(f"buffer_store_dwordx4 {v(t+2,4)}, v{vL16}, {WS}, s{sA} offen sc1\ns_add_u32 s{sA}, s{sHS2}, {j*4*11264}")
    A(f"""buffer_store_dwordx2 {v(t+6,2)}, v{vHS}, {WS}, s{sA} offen sc1
    ds_write_b32 v{vSQ}, v{t+8} offset:{j*256}
    ds_write_b32 v{vSQ}, v{t+1} offset:{1024+j*256}""")
    done(A,f'G1E{j}{L}'); stamp(A,f'G1E{j}{L}')
def rcomp(A,L):
    t=tA
    A(f"""s_lshl_b32 s{sA}, s{sWV}, 6
    s_add_u32 s{sA}, s{sA}, {SQ}
    v_bfe_u32 v{t}, v{vL16}, 6, 2
    v_and_b32 v{t+1}, 48, v{vL16}
    v_lshlrev_b32 v{t}, 8, v{t}
    v_add3_u32 v{t}, v{t}, v{t+1}, s{sA}""")
    bar(A)
    A(f"ds_read_b128 {v(t+2,4)}, v{t}\nds_read_b32 v{t+1}, v{t} offset:1024"); gap(A,4)
    A(f"""v_add_f32 v{t+2}, v{t+2}, v{t+3}
    v_add_f32 v{t+4}, v{t+4}, v{t+5}
    v_mul_f32 v{t+1}, v{t+1}, v{t+1}
    v_add_f32 v{t+2}, v{t+2}, v{t+4}
    v_fmamk_f32 v{t+1}, v{t+2}, 0xbb000000, v{t+1}
    v_min_f32 v{t+1}, 0, v{t+1}
    v_sub_f32 v{t+1}, s{sEPS}, v{t+1}
    v_rsq_f32 v{vR}, v{t+1}""")
    if L: A(f"v_sub_f32 v{vR}, 0, v{vR}")
def ldh(j,ks,sr,setup):
    b=HBUF[j%2]; x=''
    if setup: x=f"s_add_u32 s{sr}, s{sHL}, {j*4*11264+(ks//4)*4096}\n"
    if ks<8: return x+f"buffer_load_dwordx4 {v(b+4*ks,4)}, v{vL16}, {WS}, s{sr} offen offset:{(ks%4)*1024} sc1"
    return x+'\n'.join(f"buffer_load_dwordx2 {v(b+4*ks+2*h,2)}, v{vL8}, {WS}, s{sr} offen offset:{(ks%4)*1024+h*512} sc1" for h in range(2))
def hcheck(B,j,half,L):
    b=HBUF[j%2]; kss=range(0,6) if half==0 else range(6,11)
    rs=[]
    for ks in kss: rs+= [b+4*ks] if ks<8 else [b+4*ks,b+4*ks+2]
    op3=(lambda d,x,y,z:f"v_or3_b32 v{d}, v{x}, v{y}, v{z}") if L==0 else (lambda d,x,y,z:f"v_bitop3_b32 v{d}, v{x}, v{y}, v{z} bitop3:0x80")
    c=[op3(tB,rs[0],rs[1],rs[2])]; rs=rs[3:]
    while len(rs)>=2: c.append(op3(tB,tB,rs[0],rs[1])); rs=rs[2:]
    if rs: c.append(f"v_{'or' if L==0 else 'and'}_b32 v{tB}, v{tB}, v{rs[0]}")
    c.append(f"v_cmp_{'gt' if L==0 else 'le'}_i32 vcc, 0, v{tB}")
    retry(B,lambda sr:'\n'.join(ldh(j,ks,sr,ks%4==0 or ks==kss[0]) for ks in kss),'\n'.join(c),"s_cbranch_vccnz",name=f"H{'ab'[half]}{j}{L}")
    done(B,f"H{'ab'[half]}{j}{L}")
    if half==0: stamp(B,f'Ha{j}{L}')
def G2E(A,j,L):
    t=tA; acc=ACC[j%2]
    hard_at(A,f'G2_{j+1}{L}'); gap(A,1)
    for tt in range(4): A(f"ds_write_b128 v{vW}, {v(acc+4*tt,4)} offset:{tt*1024}")
    if j==0: after(A,f'addrG{L}') if L else None
    A(f"{'ds_read_b64' if L==0 else 'ds_read_b64_tr_b16'} {v(t,2)}, v{vRES} offset:{j*16384}")
    if L: A(f"v_bfe_u32 v{t+8}, v{vL16}, 2, 4\nds_bpermute_b32 v{t+8}, v{t+8}, v{vR} offset:{16*j}")
    else:
        for e in range(4): A(f"v_readlane_b32 s{sA+2+e}, v{vR}, {4*j+e}")
    bar(A)
    for sw in range(4): A(f"ds_read_b128 {v(acc+4*sw,4)}, v{vRR} offset:{sw*4096}")
    A(f"v_lshlrev_b32 v{t+2}, 16, v{t}\nv_and_b32 v{t+3}, s{sHI}, v{t}\nv_lshlrev_b32 v{t+4}, 16, v{t+1}\nv_and_b32 v{t+5}, s{sHI}, v{t+1}")
    gap(A,2)
    for e in range(4): A(f"v_add_f32 v{acc+e}, v{acc+e}, v{acc+4+e}")
    for e in range(4): A(f"v_add_f32 v{acc+8+e}, v{acc+8+e}, v{acc+12+e}")
    if not(L and j==3): A("s_barrier")
    for e in range(4): A(f"v_add_f32 v{acc+e}, v{acc+e}, v{acc+8+e}")
    for e in range(4): A(f"v_fmac_f32 v{t+2+e}, {('s%d'%(sA+2+e)) if L==0 else 'v%d'%(t+8)}, v{acc+e}")
    A(f"v_cvt_pk_bf16_f32 v{t+6}, v{t+2}, v{t+3}\nv_cvt_pk_bf16_f32 v{t+7}, v{t+4}, v{t+5}")
    if L==0:
        x=t+2; q=acc
        A(f"""v_min_u32 v{t+6}, -2, v{t+6}
        s_add_u32 s{sA}, s{sX2S}, {j*0x10000}
        buffer_store_dwordx2 {v(t+6,2)}, v{vL8}, {WS}, s{sA} offen sc1
        v_mul_f32 v{q}, v{x}, v{x}
        v_mul_f32 v{q+1}, v{x+1}, v{x+1}
        v_mul_f32 v{q+2}, v{x+2}, v{x+2}
        v_mul_f32 v{q+3}, v{x+3}, v{x+3}
        v_permlane32_swap_b32 v{x}, v{x+2}
        v_permlane32_swap_b32 v{x+1}, v{x+3}
        v_permlane32_swap_b32 v{q}, v{q+2}
        v_permlane32_swap_b32 v{q+1}, v{q+3}
        v_add_f32 v{x}, v{x}, v{x+2}
        v_add_f32 v{x+1}, v{x+1}, v{x+3}
        v_add_f32 v{q}, v{q}, v{q+2}
        v_add_f32 v{q+1}, v{q+1}, v{q+3}
        v_permlane16_swap_b32 v{x}, v{x+1}
        v_permlane16_swap_b32 v{q}, v{q+1}
        v_add_f32 v{x}, v{x}, v{x+1}
        v_add_f32 v{q}, v{q}, v{q+1}
        s_add_u32 s{sA}, s{sSTA}, {j*8192}
        v_add_f32_dpp v{x}, v{x}, v{x} row_ror:8 row_mask:0xf bank_mask:0xf
        v_add_f32_dpp v{x}, v{q}, v{q} row_ror:8 row_mask:0xf bank_mask:0xc
        v_add_f32_dpp v{x}, v{x}, v{x} row_half_mirror row_mask:0xf bank_mask:0xf
        v_add_f32_dpp v{x}, v{x}, v{x} quad_perm:[2,3,0,1] row_mask:0xf bank_mask:0xf
        v_add_f32_dpp v{x}, v{x}, v{x} quad_perm:[1,0,3,2] row_mask:0xf bank_mask:0xf
        v_cndmask_b32 v{x}, v{x}, 1.0, s[{sMC}:{sMC+1}]
        buffer_atomic_add_f32 v{x}, v{vST}, {WS}, s{sA} offen sc1""")
    else:
        A(f"s_add_u32 s{sA}, s{sOB}, {j*0x80000}\nbuffer_store_dwordx2 {v(t+6,2)}, v{vST}, s[{sOUT}:{sOUT+3}], s{sA} offen")
    done(A,f'G2E{j}{L}'); stamp(A,f'G2E{j}{L}')
def glue(l,text):
    for x in text.strip().split('\n'):
        x=x.strip(); l(x,'glue' if x.startswith('s_') else None)
def atc(l,c,L): at(l,c[0]+str(L),c[1])
p,w1rest=phaseP()
M=P(); A=P(); B=P(); C=P()
for L in range(2):
    conv_main(M,L)
    if L==0: colsum_main(M)
    g1_main(M,L); g2_main(M,L)
N(A,0,0)
for L in range(2):
    for q in range(4):
        E(A,q,L)
        if q<3:
            if L: atc(A,CFG['n'][q+1],L); after(A,f'Nld{q+1}{L}')
            elif q==2: after(A,'Nld30')
            N(A,q+1,L)
    if L==0:
        hard_at(A,'CSend'); gap(A,2)
        A(f"s_mul_i32 s{sA}, s{sWV}, 192\ns_add_u32 s{sA}, s{sA}, {CSL}\nv_lshrrev_b32 v{tA}, 8, v{vL16}\nv_lshl_add_u32 v{tA}, v{tA}, 4, s{sA}")
        for t in range(3): A(f"ds_write_b128 v{tA}, {v(vCS+4*t,4)} offset:{t*64}")
    else:
        A(f"s_mul_i32 s{sA}, s{sWV}, 192\ns_add_u32 s{sA}, s{sA}, {CSL}\nv_lshrrev_b32 v{tA}, 8, v{vL16}\nv_lshl_add_u32 v{tA}, v{tA}, 4, s{sA}")
        for t in range(3): A(f"ds_read_b128 {v(vCS+4*t,4)}, v{tA} offset:{t*64}")
    for j in range(4): G1E(A,j,L)
    rcomp(A,L)
    for j in range(4):
        if L==0 and j==3: atc(A,CFG['n0'],0); after(A,'Nld01'); N(A,0,1)
        G2E(A,j,L)
for L in range(2):
    base=f'F0{L}'; g1o=144+(48 if L==0 else 0)
    ev=[]
    for j in range(4):
        ev.append((CFG['xld'][L][j],0,j)); ev.append((CFG['xst'][L][j],1,j))
    if L:
        for q in (1,2,3): ev.append((CFG['nld'][q],2,q))
    else: ev.append((0,3,3))
    ev.sort()
    for ps,kind,j in ev:
        at(B,base,ps)
        if kind==0:
            after(B,[f'Ew1{L}',f'Nuse3{L}',f'Ew3{L}',f'E3{L}'][j])
            if j==3 and L==0: hard_at(B,'CSend')
            glue(B,ldx1(j,L)(sB))
        elif kind==1: stage(B,j,L)
        elif kind==2:
            if j>=2: after(B,f'Nuse{j-2}{L}')
            glue(B,ldx2(j)(sB)); done(B,f'Nld{j}{L}')
        else: after(B,'Nuse00'); glue(B,ldst0(3)(sB)); done(B,'Nld30')
    after(B,f'E3{L}')
    if L: after(B,'addrG1')
    ev=[]; D=CFG['hD']
    for j in range(4):
        for ks in range(11):
            ps=44*j+int(ks*CFG.get('hstep',4))-D
            if j>=2: ps=max(ps,44*(j-2)+4*ks+4)
            if j==1: ps=max(ps,0)
            ev.append((ps,0,j,ks))
        ev.append((44*j-CFG.get('hck',5),1,j,0)); ev.append((44*j+24-CFG.get('hck',5),1,j,1))
    ev.sort(key=lambda e:(e[0],e[1]))
    last=None
    for ps,kind,j,ks in ev:
        if kind==0:
            if j>=2: hard_at(B,f'G2_0{L}',44*(j-2)+4*ks+4)
            if j==1: hard_at(B,f'G2_0{L}',0)
            if j==1 and ks>=8: after(B,f'G1E3{L}')
            if j==0: atc(B,CFG['h0'],L)
            at(B,f'G2_0{L}',ps); glue(B,ldh(j,ks,sB,last!=(j,ks//4))); last=(j,ks//4)
        else: at(B,f'G2_0{L}',ps); hcheck(B,j,ks,L)
        if L==0 and kind==1 and j==3 and ks==0:
            hard_at(B,'G2_30'); after(B,'addrN1'); atc(B,CFG['n0ld'],0); glue(B,ldx2(0)(sB)); done(B,'Nld01'); last=None
C.extend(w1rest); done(C,'W1')
at(C,'K30',CFG.get('w2at',0)); C.extend(w2loads()); done(C,'W2')
after(C,'S30')
C(f"v_mov_b32 v100, -1\nv_mov_b32 v101, -1\nv_mov_b32 v102, -1\nv_mov_b32 v103, -1")
glue(C,f"s_add_u32 s{sC}, s{sPZ}, {X1[1]}\nbuffer_store_dwordx4 v[100:103], v{vT16}, {WS}, s{sC} offen sc1\ns_add_u32 s{sC}, s{sPZ}, {X1[1]+4096}\nbuffer_store_dwordx4 v[100:103], v{vT16}, {WS}, s{sC} offen sc1")
done(C,'PZ')
hard_at(C,'G2_30'); conv_addr(C,sC,64,65,66,1)
after(C,'G2E30'); at(C,'G1_01',8); g2_addr(C,sC,64,65,1)
i0=[n for n,i in enumerate(M) if i.kind=='mark' and i.mn=='pos' and i.ops[0]=='G1_40'][0]
M.insert(i0-6,Mark('need','PZ'))
log=[]
body=weave(M,[A,B,C],log,CFG.get('pri',3))
for x in log: print(x,file=sys.stderr)
p.extend(body)
stamp(p,'end')
if STAMP: p(f"v_lshrrev_b32 v12, 1, v{vL8}\nbuffer_store_dword v{vSTP}, v12, {WS}, s{sTS} offen")
p("Lend:\ns_endpgm\nLbail:\ns_endpgm"); p.extend(stubs); p("Lcodeend:")
out=finalize(p,CFG.get('merge',14))
if CFG.get('al',1): print('align',align32(out),file=sys.stderr)
ref=open(f'cdna_kernels/{NAME}.s.ref').read().split('\n')
hdr=[l for l in ref if l.startswith(';') and '@launch' not in l and 'Override' not in l and 'Harness parses' not in l]
txt='\n'.join(hdr)+f"""
; Generated by my own script: one persistent kernel (prep | conv | ffn1 | ffn2 | conv | ffn1 | ffn2).
; cfg {" ".join(sys.argv[2:])}
; @launch grid=(256,1,1) block=(256,1,1) lds={LDSN}
.amdgcn_target "amdgcn-amd-amdhsa--gfx950"
.text
.globl {NAME}_kernel
.p2align 8
.type {NAME}_kernel,@function
.set CODESZ, Lcodeend-{NAME}_kernel-64
{NAME}_kernel:
"""+'\n'.join(('' if i.kind=='label' else '  ')+i.text for i in out)+f"""
.section .rodata,"a"
.p2align 6
.amdhsa_kernel {NAME}_kernel
  .amdhsa_next_free_vgpr 512
  .amdhsa_next_free_sgpr 102
  .amdhsa_accum_offset 256
  .amdhsa_group_segment_fixed_size 0
  .amdhsa_kernarg_size 104
  .amdhsa_user_sgpr_count 2
  .amdhsa_user_sgpr_kernarg_segment_ptr 1
  .amdhsa_system_sgpr_workgroup_id_x 1
.end_amdhsa_kernel
"""
open(sys.argv[1],'w').write(txt)
from collections import Counter
print(len(out),'instrs',Counter(i.kind for i in out),'nops',sum(i.mn=='s_nop' for i in out),'waits',sum(i.mn=='s_waitcnt' for i in out),file=sys.stderr)
```

```python
import re
REG=re.compile(r'^-?\|?(?:abs\()?([vas])(?:(\d+)|\[(\d+):(\d+)\])\)?\|?$')
TRANS=('v_exp_f32','v_log_f32','v_rcp_f32','v_rsq_f32','v_sqrt_f32','v_sin_f32','v_cos_f32')
def regs_of(op):
    op=op.strip()
    if op in('vcc',): return {'vcc'}
    if op in('exec',): return {'exec'}
    if op=='m0': return {'m0'}
    m=REG.match(op)
    if not m: return set()
    k=m.group(1)
    if m.group(2) is not None: return {k+m.group(2)}
    return {k+str(i) for i in range(int(m.group(3)),int(m.group(4))+1)}
class I:
    __slots__=('text','mn','ops','rd','wr','kind','passes','mods','A','B','C','wide','tag')
    def __init__(s,text,tag=None):
        s.text=text; s.tag=tag
        t=text.split(';')[0].strip()
        s.rd=set(); s.wr=set(); s.kind='other'; s.passes=0; s.A=s.B=s.C=set(); s.wide=set()
        if t.endswith(':') or t.startswith('.') or not t:
            s.mn=t; s.ops=[]; s.mods=''; s.kind='label' if t.endswith(':') else 'dir'; return
        p=t.split(None,1); s.mn=mn=p[0]; rest=p[1] if len(p)>1 else ''
        ops=[];cur='';d=0
        for ch in rest:
            if ch in'[(': d+=1
            if ch in'])': d-=1
            if ch==',' and d==0: ops.append(cur.strip());cur=''
            else: cur+=ch
        if cur.strip(): ops.append(cur.strip())
        mods=''
        if ops:
            l=ops[-1].split(None,1)
            if len(l)>1: ops[-1]=l[0]; mods=l[1]
        s.ops=ops; s.mods=mods
        R=[regs_of(o) for o in ops]
        U=lambda xs:set().union(*xs) if xs else set()
        if mn.startswith('v_mfma'):
            s.kind='mfma'; s.wr=R[0]; s.A=R[1]; s.B=R[2]; s.C=R[3]; s.rd=U(R[1:])
            s.passes=8 if '32x32' in mn else 4
        elif mn.startswith('v_'):
            s.kind='valu'; s.wr=R[0]; s.rd=U(R[1:])
            if 'permlane' in mn and 'swap' in mn: s.wr=U(R[:2]); s.rd=U(R[:2])
            if mn.startswith(('v_fmac','v_pk_fmac','v_dot2c','v_writelane')) or '_dpp' in mn or 'op_sel:[0,0,1]' in mods or '_sdwa' in mn: s.rd=s.rd|R[0]
            if mn.startswith(('v_add_co','v_sub_co','v_addc_co')): s.wr=U(R[:2]); s.rd=U(R[2:])
        elif mn.startswith(('buffer_load','global_load')):
            s.kind='vmem'
            if ' lds' in ' '+mods or 'load_lds' in mn: s.rd=U(R)|{'m0'}
            else:
                s.wr=R[0]; s.rd=U(R[1:])
                if 'd16' in mn: s.rd=s.rd|R[0]
        elif mn.startswith(('buffer_store','global_store','buffer_atomic','global_atomic')):
            s.kind='vmem'; s.rd=U(R)
            if 'x4' in mn or 'x3' in mn: s.wide=R[0] if mn.startswith('buffer') else R[1]
            if 'atomic' in mn and 'sc0' in mods: s.wr=R[0]
        elif mn.startswith('ds_'):
            s.kind='lds'
            if mn.startswith(('ds_read','ds_bpermute','ds_permute','ds_swizzle')):
                s.wr=R[0]; s.rd=U(R[1:])
                if 'd16' in mn: s.rd=s.rd|R[0]
            else: s.rd=U(R)
        elif mn.startswith(('s_load','s_memtime','s_memrealtime','s_buffer_load')):
            s.kind='smem'; s.wr=R[0]; s.rd=U(R[1:])
        elif mn.startswith('s_'):
            s.kind='salu'
            if mn.startswith(('s_cbranch','s_branch')):
                s.kind='branch'
                if 'vcc' in mn: s.rd={'vcc'}
            elif mn.startswith(('s_cmp','s_bitcmp','s_waitcnt','s_nop','s_barrier','s_endpgm','s_setprio','s_sleep')): s.rd=U(R)
            else:
                s.wr=R[0]; s.rd=U(R[1:])
                if 'saveexec' in mn: s.wr=s.wr|{'exec'}
                if mn.startswith(('s_addk','s_mulk')): s.rd=s.rd|R[0]
    def states(s):
        if s.kind in('label','dir'): return 0
        if s.mn=='s_nop': return int(s.ops[0])+1
        return 1
def isv(r): return r[0] in'va' and r!='vcc'
def iss(r): return r[0]=='s' or r=='vcc'
def need_states(p,c):
    n=0
    if p.kind=='valu':
        vw={r for r in p.wr if isv(r)}; sw={r for r in p.wr if iss(r)}
        if vw&c.rd:
            if c.kind=='mfma': n=max(n,2)
            if c.kind=='valu':
                if '_dpp' in c.mn or 'permlane' in c.mn: n=max(n,2)
                if c.mn.startswith(('v_readlane','v_readfirstlane')): n=max(n,1)
                if p.mn.startswith(TRANS): n=max(n,1)
                if '_sdwa' in p.mn or 'op_sel' in p.mods and not p.mn.startswith('v_pk'): n=max(n,1)
        if sw&c.rd:
            if c.kind=='vmem': n=max(n,5)
            if c.kind=='valu': n=max(n,4 if c.mn.startswith(('v_readlane','v_writelane')) else 2)
            if c.kind in('salu','smem','branch'): n=max(n,1)
    elif p.kind=='mfma':
        big=p.passes==8
        if c.kind=='mfma':
            if p.wr&(c.A|c.B): n=max(n,12 if big else 8)
            if p.wr&c.C and not(p.wr==c.C and p.passes==c.passes): n=max(n,10 if big else 6)
            if p.wr&c.wr and not(p.wr==c.wr and p.wr==c.C): n=max(n,10 if big else 6)
        elif c.kind in('valu','vmem','lds'):
            if p.wr&(c.rd|c.wr): n=max(n,12 if big else 8)
            if p.C&c.wr: n=max(n,7 if big else 3)
    elif p.kind=='vmem':
        if p.wide&c.wr: n=max(n,2)
    elif p.kind=='salu':
        if 'm0' in p.wr and 'm0' in c.rd and c.kind in('vmem','lds'): n=max(n,1)
    if p.kind in('vmem','lds') and c.kind=='valu' and '_dpp' in c.mn: pass
    return n
WC=re.compile(r'(vmcnt|lgkmcnt)\((\d+)\)')
def finalize(ins,MERGE=14):
    out=[]; vm=[]; lg=[]; lgpos={}
    def emit(i):
        need=0; dist=0
        for p in reversed(out):
            if dist>=12: break
            n=need_states(p,i)
            if n-dist>need: need=n-dist
            dist+=p.states()
        while need>0:
            k=min(need,16); out.append(I('s_nop %d'%(k-1))); need-=k
        out.append(i)
    for i in ins:
        if i.kind=='dir' and i.text.startswith('.!reset'):
            vm=[];lg=[]; continue
        if i.kind=='dir' and i.text.startswith('.!ldswr'):
            k=max([n for n,q in enumerate(lg) if q.kind=='smem' or not q.wr],default=None)
            if k is not None:
                n=0 if any(q.kind=='smem' for q in lg) else min(len(lg)-1-k,15)
                lg=lg[len(lg)-n:] if n else []
                emit(I('s_waitcnt lgkmcnt(%d)'%n))
            continue
        if i.kind=='dir' and i.text.startswith(('.!vmtag','.!vmkeep')):
            tg=i.text.split()[1]
            k=max([n for n,q in enumerate(vm) if q.tag==tg],default=None)
            if k is not None:
                n=min(sum('; skip' not in q.text for q in vm[k+1:]),63)
                if i.text.startswith('.!vmtag'): vm=vm[k+1:]
                emit(I('s_waitcnt vmcnt(%d)'%n))
            continue
        if i.kind in('label','dir'): out.append(i); continue
        if i.mn=='s_waitcnt':
            for k,n in WC.findall(i.text):
                n=int(n)
                if k=='vmcnt': vm=vm[len(vm)-n:] if n<len(vm) and n>0 else ([] if n==0 else vm)
                else: lg=lg[len(lg)-n:] if n<len(lg) and n>0 else ([] if n==0 else lg)
            emit(i); continue
        touch=i.rd|i.wr
        wv=wl=None
        for k,(p) in enumerate(vm):
            if p.wr&touch and not(i.kind=='vmem' and not(p.wr&i.rd) and False): wv=len(vm)-1-k
        anysm=any(p.kind=='smem' for p in lg)
        for k,p in enumerate(lg):
            if p.wr&touch:
                if i.kind=='lds' and p.kind=='lds' and not(p.wr&(i.rd-(i.wr if 'd16' in i.mn else set()))): continue
                wl=0 if anysm else len(lg)-1-k
        if wv is not None or wl is not None:
            parts=[]
            if wv is not None:
                k=len(vm)-1-wv; n=min(sum('; skip' not in q.text for q in vm[k+1:]),63); parts.append('vmcnt(%d)'%n)
                if '; skip' in vm[k].text: vm=vm[:k]+vm[k+1:]
                else: vm=vm[k+1:]
            if wl is not None:
                while wl>0 and len(out)-lgpos[id(lg[len(lg)-wl])]>=MERGE: wl-=1
                wl=min(wl,15); parts.append('lgkmcnt(%d)'%wl); lg=lg[len(lg)-wl:] if wl else []
            emit(I('s_waitcnt '+' '.join(parts)))
        emit(i)
        if i.kind=='vmem': vm.append(i)
        elif i.kind in('lds','smem'): lg.append(i); lgpos[id(i)]=len(out)
    return out
class P(list):
    def __call__(s,text,tag=None):
        for l in text.strip().split('\n'):
            l=l.strip()
            if l: s.append(I(l,tag))
        return s
def v(a,n=1): return 'v%d'%a if n==1 else 'v[%d:%d]'%(a,a+n-1)
def a(x,n=1): return 'a%d'%x if n==1 else 'a[%d:%d]'%(x,x+n-1)
def s(x,n=1): return 's%d'%x if n==1 else 's[%d:%d]'%(x,x+n-1)
def interleave(main,side,start=0,per=1,every=1):
    out=P(); side=list(side); k=0; m=0
    for i in main:
        out.append(i)
        if i.kind=='mfma':
            m+=1
            if m>start and (m-start)%every==0:
                for _ in range(per):
                    if k<len(side): out.append(side[k]); k+=1
    out.extend(side[k:])
    return out


class Mark(I):
    def __init__(s,what,*n):
        s.text='.!'+what; s.kind='mark'; s.mn=what; s.ops=list(n); s.rd=set(); s.wr=set(); s.mods=''; s.tag=None; s.passes=0; s.A=s.B=s.C=s.wide=set()
def gap(l,n): l.append(Mark('gap',n))
def at(l,name,off=0): l.append(Mark('at',name,off))
def done(l,tag): l.append(Mark('done',tag))
def after(l,tag): l.append(Mark('after',tag))
def need(l,tag): l.append(Mark('need',tag))
def pos(l,name): l.append(Mark('pos',name))
def rate(l,r): l.append(Mark('rate',r))
def cost(i):
    if i.kind=='valu':
        if i.mn.startswith(TRANS) or 'permlane' in i.mn: return 2
        return 1
    if i.kind=='lds': return 3 if 'write_b128' in i.mn else (2 if 'write' in i.mn else 1)
    if i.kind=='vmem': return 2
    if i.kind in('label','mark'): return 0
    if i.kind=='branch': return 1
    return 0.5
def weave(main,sides,log=None,PRI=3,VG=3,DG=2):
    POS={}; n=0
    for i in main:
        if i.kind=='mfma': n+=1
        elif i.kind=='mark' and i.mn=='pos': POS[i.ops[0]]=n
    out=P(); S=[list(x) for x in sides]; hold=[0]*len(S); fin=set(); g=[0]; R=[1.0]
    def owner(tag):
        for k,sd in enumerate(S):
            if any(i.kind=='mark' and i.mn=='done' and i.ops[0]==tag for i in sd): return k
        raise Exception('no producer for '+tag)
    def pop(k):
        i=S[k].pop(0); out.append(i)
        while i.tag=='glue':
            i=S[k].pop(0); out.append(i)
    def force(tag):
        if tag in fin: return
        k=owner(tag); c=0
        while tag not in fin:
            i=S[k][0]
            if i.kind=='mark':
                S[k].pop(0)
                if i.mn=='done': fin.add(i.ops[0])
                elif i.mn=='after': force(i.ops[0])
                elif i.mn=='at' and len(i.ops)>2 and POS[i.ops[0]]+i.ops[1]>g[0]: raise Exception(f'hard at violated {i.ops} forcing {tag} at {g[0]}')
            else: pop(k); c+=1
        hold[k]=0
        if log is not None and c: log.append(f'forced {c} instrs for {tag} at mfma {g[0]}')
    def ready(k):
        sd=S[k]
        while sd and sd[0].kind=='mark':
            m=sd[0]
            if m.mn=='gap': hold[k]=g[0]+m.ops[0]
            elif m.mn=='at':
                if POS[m.ops[0]]+m.ops[1]>g[0]: return False
            elif m.mn=='done': fin.add(m.ops[0])
            elif m.mn=='after':
                if m.ops[0] not in fin: return False
            sd.pop(0)
        return bool(sd) and g[0]>=hold[k]
    nxt={'vm':0,'dw':0}
    def memhead(k):
        n=0
        while S[k][n].tag=='glue' and S[k][n].kind=='salu': n+=1
        return S[k][n] if S[k][n].kind in('lds','vmem') else None
    def okmem(x):
        if x.kind=='vmem': return g[0]>=nxt['vm']
        return g[0]>=nxt['dw']
    def usedmem(x):
        if x.kind=='vmem': nxt['vm']=g[0]+(VG if 'x4' in x.mn else (VG+1)//2)
        elif 'write_b128' in x.mn: nxt['dw']=g[0]+DG
    credit=0.0; idx=0; L=list(main)
    while idx<len(L):
        i=L[idx]; idx+=1
        if i.kind=='mark':
            if i.mn=='need': force(i.ops[0])
            elif i.mn=='rate': R[0]=i.ops[0]
            continue
        out.append(i)
        if i.kind!='mfma': continue
        g[0]+=1
        cap=2*R[0]+credit; nmem=0; sawv=False
        while idx<len(L) and (L[idx].kind in('lds','vmem') or (L[idx].kind=='mark' and L[idx].mn in('pos','rate'))):
            if L[idx].kind=='mark':
                if L[idx].mn=='rate': R[0]=L[idx].ops[0]
            else: out.append(L[idx]); cap-=cost(L[idx]); nmem+=1
            idx+=1
        j=idx
        while j<len(L) and L[j].kind!='mfma': cap-=cost(L[j]); j+=1
        prog=True
        while prog and cap>0.01:
            prog=False
            cand=[k for k in range(len(S)) if ready(k)]
            pick=None
            if not sawv and nmem<(1 if R[0]<1.4 else 2):
                for k in cand:
                    x=memhead(k)
                    if x is not None and (k==cand[0] or g[0]%PRI==0) and okmem(x): pick=k; break
            if pick is None:
                for k in cand:
                    x=S[k][0]
                    if memhead(k) is not None: continue
                    if cost(x)>cap+0.51 and (sawv or nmem): continue
                    pick=k; break
            if pick is not None:
                x=memhead(pick) or S[pick][0]; cap-=cost(x)
                if x.kind in('lds','vmem'): nmem+=1; usedmem(x)
                if x.kind=='valu': sawv=True
                pop(pick); prog=True
        credit=min(cap,0.0)
        for k in range(len(S)): ready(k)
    for k in range(len(S)):
        while S[k]:
            i=S[k][0]
            if i.kind=='mark':
                S[k].pop(0)
                if i.mn=='done': fin.add(i.ops[0])
                elif i.mn=='after': force(i.ops[0])
            else: pop(k)
    return out
def hard_at(l,name,off=0): l.append(Mark('at',name,off,1))

import subprocess,tempfile,os
def align32(ins):
    real=[i for i in ins if i.kind not in('label','dir')]
    def enc(lines):
        src='.amdgcn_target "amdgcn-amd-amdhsa--gfx950"\n.set CODESZ, 40000\n'+'\n'.join(lines)+'\n'
        r=subprocess.run(['llvm-mc','-triple=amdgcn-amd-amdhsa','-mcpu=gfx950','-show-encoding'],input=src,capture_output=True,text=True)
        return r
    r=enc([i.text for i in ins]); assert r.returncode==0,r.stderr[:500]
    sz=[len(m.split(',')) for m in re.findall(r'encoding: \[([^\]]*)\]',r.stdout)]
    assert len(sz)==len(real),(len(sz),len(real))
    def widen(i):
        return i.mn+'_e64 '+i.text.split(None,1)[1]
    can=[i.kind=='valu' and n==4 and not i.mn.startswith(('v_readfirstlane','v_permlane','v_accvgpr')) and not i.mn.endswith(('_e32','_e64')) for i,n in zip(real,sz)]
    INF=10**9; st={0:(0,None)}; hist=[]
    for i,n,c in zip(real,sz,can):
        ns={}
        for off,(cost_,_) in st.items():
            for w in ((0,1) if c else (0,)):
                m=8 if w else n
                k=cost_+(40 if off+m>32 else 0)+w
                o=(off+m)%32
                if o not in ns or k<ns[o][0]: ns[o]=(k,(off,w))
        hist.append(ns); st=ns
    off=min(st,key=lambda o:st[o][0]); tot=st[off][0]; nw=0
    for i,h in zip(reversed(real),reversed(hist)):
        po,w=h[off][1]
        if w: i.text=widen(i); nw+=1
        off=po
    return nw,tot//40

def sizes_of(ins):
    src='.amdgcn_target "amdgcn-amd-amdhsa--gfx950"\n.set CODESZ, 40000\n'+'\n'.join(i.text for i in ins)+'\n'
    r=subprocess.run(['llvm-mc','-triple=amdgcn-amd-amdhsa','-mcpu=gfx950','-show-encoding'],input=src,capture_output=True,text=True)
    assert r.returncode==0,r.stderr[:500]
    sz=[len(m.split(',')) for m in re.findall(r'encoding: \[([^\]]*)\]',r.stdout)]
    it=iter(sz); return [0 if i.kind in('label','dir') else next(it) for i in ins]

def win(l,name,a,b): l.append(Mark('win',name,a,b))
def plan(main,sides,log=None):
    POS={}; n=0
    for i in main:
        if i.kind=='mfma': n+=1
        elif i.kind=='mark' and i.mn=='pos': POS[i.ops[0]]=n
    S=[]
    for sd in sides:
        units=[]; cur=[]
        for i in sd:
            cur.append(i)
            if i.tag!='glue': units.append(cur); cur=[]
        assert not cur
        res=[]; k=0
        while k<len(units):
            u=units[k]; assert u[0].kind=='mark' and u[0].mn=='win',u[0].text
            nm,a_,b_=u[0].ops; k+=1; grp=[]
            while k<len(units) and not(units[k][0].kind=='mark' and units[k][0].mn=='win'): grp.append(units[k]); k+=1
            w=[sum(cost(i) if i.kind!='mark' else (i.ops[0] if i.mn=='gap' else 0) for i in x) for x in grp]
            real=[j for j,x in enumerate(grp) if x[0].kind!='mark']
            tot=sum(w[:real[-1]]) if real else 0; acc=0
            for x,c in zip(grp,w):
                res.append((POS[nm]+a_+((b_-a_)*acc/tot if tot else 0),x)); acc+=c
        S.append(res)
    out=P(); fin=set(); g=[0]
    def owner(tag):
        for k,sd in enumerate(S):
            if any(x[0].kind=='mark' and x[0].mn=='done' and x[0].ops[0]==tag for _,x in sd): return k
        raise Exception('no producer for '+tag)
    def force(tag):
        if tag in fin: return
        k=owner(tag); c=0
        while tag not in fin:
            t,x=S[k].pop(0); m=x[0]
            if m.kind=='mark':
                if m.mn=='done': fin.add(m.ops[0])
                elif m.mn=='after': force(m.ops[0])
                elif m.mn=='at' and POS[m.ops[0]]+m.ops[1]>g[0]: raise Exception(f'hard at violated {m.ops} forcing {tag} at {g[0]}')
            else: out.extend(x); c+=1
        if log is not None and c: log.append(f'forced {c} for {tag} at mfma {g[0]}')
    def ready(k):
        sd=S[k]
        while sd and sd[0][1][0].kind=='mark':
            m=sd[0][1][0]
            if m.mn=='at' and POS[m.ops[0]]+m.ops[1]>g[0]: return False
            if m.mn=='after' and m.ops[0] not in fin: return False
            if m.mn=='done': fin.add(m.ops[0])
            sd.pop(0)
        return bool(sd) and sd[0][0]<=g[0]+1e-6
    ismem=lambda x:any(i.kind in('lds','vmem') for i in x)
    idx=0; L=list(main)
    while idx<len(L):
        i=L[idx]; idx+=1
        if i.kind=='mark':
            if i.mn=='need': force(i.ops[0])
            continue
        out.append(i)
        if i.kind!='mfma': continue
        g[0]+=1
        while idx<len(L) and (L[idx].kind in('lds','vmem') or (L[idx].kind=='mark' and L[idx].mn in('pos','rate'))):
            if L[idx].kind!='mark': out.append(L[idx])
            idx+=1
        sawv=False
        while True:
            cand=[k for k in range(len(S)) if ready(k)]
            if not cand: break
            mem=[k for k in cand if ismem(S[k][0][1])]
            if mem and not sawv: k=mem[0]
            else:
                oth=[k for k in cand if k not in mem]
                if oth: k=min(oth,key=lambda q:S[q][0][0])
                else:
                    late=[k for k in mem if S[k][0][0]<=g[0]-1+1e-6]
                    if not late: break
                    k=late[0]
            t,x=S[k].pop(0); out.extend(x)
            if any(q.kind=='valu' for q in x): sawv=True
    for k in range(len(S)):
        while S[k]:
            t,x=S[k].pop(0); m=x[0]
            if m.kind=='mark':
                if m.mn=='done': fin.add(m.ops[0])
                elif m.mn=='after': force(m.ops[0])
            else: out.extend(x)
    return out
```

```python
import sys,struct,os,json,re
from asmlib import *
NAME='interleave_layers__ssm_conv_s4d__dense_activation_relu__prompt'
STAMP=('stamp' in sys.argv); CLK='s_memtime' if 'cyc' in sys.argv else 's_memrealtime'
CFG=dict(dist=8,hck=6,W=dict(
 N10=('F0',1,11),E0=('K0',2,22),N20=('K0',24,44),E1=('K1',2,22),N30=('K1',23,40),E2=('K2',2,22),E3=('K3',2,20),cs0=('G1_0',2,12),cs1=('K3',21,26),
 G1E0=('G1_1',2,24),G1E1=('G1_2',2,24),G1E2=('G1_3',2,24),G1E3=('G1_4',2,20),rc=('G2_0',24,42),
 G2E0=('G2_1',1,34),G2E1=('G2_2',1,34),G2E2=('G2_3',1,34),G2E3=('G2_4',0,0),
 N01=('F0',0,0),N11=('F0',28,50),N21=('F0',56,92),N31=('F0',97,121),
 nld30=('F0',2,2),nld01=('F0',-40,-34),nld11=('F0',-3,0),nld21=('F0',14,20),nld31=('F0',52,58),
 xld00=('F0',100,112),xld10=('F0',150,162),xld20=('F0',196,208),xld30=('F0',236,248),
 xld01=('F0',92,102),xld11=('F0',150,160),xld21=('F0',196,206),xld31=('F0',232,242),
 S00=('F0',166,186),S01=('F0',132,143),S11=('G1_0',34,43),S21=('G1_1',32,43),S1=('G1_0',26,42),S2=('G1_1',26,42),S3=('G1_2',26,42),
 hld0a=('G1_2',28,46),hld0b=('G1_3',0,22),hld1a=('G1_3',28,40),hld1b=('G2_0',0,10),hld1c=('G2_0',16,26),
 hld2a=('G2_0',28,44),hld2b=('G2_1',3,20),hld3a=('G2_1',30,46),hld3b=('G2_2',5,22),
 w1=('F0',0,130),w2=('K3',4,170),pz=('G1_2',20,27),ca=('G2_3',0,30),ga=('G1_0',24,40)))
if os.path.exists('W.json') and 'now' not in sys.argv: CFG['W'].update({k:tuple(x) for k,x in json.load(open('W.json')).items()})
for a_ in sys.argv[2:]:
    if '=' in a_:
        k_,v_=a_.split('=',1)
        if k_.startswith('W.'): CFG['W'][k_[2:]]=eval(v_)
        else: CFG[k_]=eval(v_)
W1F=0x1200000; W2F=0x180000; ST0=0x2E0000; CNT=0x2E4000; CNW=CNT+16384; STA=0x2F0000
X1=[0x400000,0x600000]; X2=0x800000; H=0xA00000; X0=0x1000000; TS=0x1600000; WSN=0x1700000
OOB=0x7ff00000
XT=0; KC=65536; U=132096; RB=141312; SQ=157696; CSL=SQ+2048; DUM=CSL+768; LDSN=163840
TT=RB; WST=KC
sX,sWS,sOUT,sW,sDBG=8,12,16,20,28
sWV,sRB,sCB,sCP=3,4,5,6
sM1,sM2,sM3=60,62,64
sD=66; s8F=67; sTS=68; sHI=70; sPL=71; sPH=72; sEPS=73; sSPIN=74; sNEG=75
sA=76; sB=84; sC=90; sST=94; sR=96; sCK=98; sCK2=100
sXS,sXL,sHS,sHS2,sHL,sX2S,sSTA,sOB,sX2L,sW1,sW2,sPZ=32,33,24,25,26,27,46,47,7,34,35,36
sPZ2=69; sPZ=69; sMC=38
sT=sA; sTS2=sTS if 'probe' not in CFG else 37
vGF,vHS,vW,vT16,vL16,vL8,vRR,vRES,vST,vSQ,vR,vSTP=range(12)
tA=12; tB=22
ACC=[24,40]; HBUF=[56,100]
vCA,vCB,vNU,vER,vXS,vXL,vD,vSL=range(56,64)
LAND=68; BASES=[88,64]; ONES=92
TACC=[24,28,32,36,100,104,108,112]
POOL=[92,96,116,120,124,128,132,136,140]; POOL2=[40,44,48,52]
F=[116,120,124,128]; vCS=132
STG=[24,68,100,84]
def W1(ks,t): return a(ks*12+t*4,4)
def W2(ks,t):
    f=ks*4+t
    return a(192+f*4,4) if f<16 else v(144+(f-16)*4,4)
WS=f"s[{sWS}:{sWS+3}]"
fl=lambda x:hex(struct.unpack('<I',struct.pack('<f',x))[0])
stubs=P(); nst=[0]; lab=[0]; PG0=[0]
def newlab(n): lab[0]+=1; return f"L{n}{lab[0]}"
def stamp(l,name):
    if 'probe' in CFG:
        if name=='start': l("s_memrealtime s[40:41]\ns_waitcnt lgkmcnt(0)\ns_mov_b32 s101, s40") if False else None
        if name==CFG['probe']: l(f"s_memrealtime s[{sST}:{sST+1}]",'glue'); l(f"s_mov_b32 s97, s{sST}")
        return
    if not STAMP: return
    if name not in('start','end') and not re.match(CFG.get('st','$^'),name): return
    k=nst[0]; nst[0]+=1; assert k<28
    l(f"{CLK} s[{sST}:{sST+1}]",'glue'); l(f"v_writelane_b32 v{vSTP}, s{sST}, {k} ; stamp {k} {name}")
def bar(l,name='?'):
    n0=len(l); stamp(l,'b'+name+'<'); diag=len(l)>n0
    if diag: l[-1].tag='glue'
    l(".!ldswr",'glue'); l("s_barrier",'glue' if diag else None); stamp(l,'b'+name+'>')
nrt=[28]
def retry(l,loads,check,branch,pre='',name='?'):
    R=newlab('retry'); B=newlab('back')
    n0=len(l); stamp(l,'c'+name+'<'); diag=len(l)>n0
    if diag: l[-1].tag='glue'
    l(check,'glue' if diag else None)
    if pre: l(pre,'glue')
    l(f"{branch} {R}",'glue'); l(f"{B}:",'glue' if diag else None)
    stamp(l,'c'+name+'>')
    stubs(f".!reset\n{R}:\ns_nop 7\ns_sub_u32 s{sSPIN}, s{sSPIN}, 1\ns_cbranch_scc1 Lbail")
    if STAMP:
        k=nrt[0]; nrt[0]+=1; assert k<64
        stubs(f"v_readlane_b32 s{sR}, v{vSTP}, {k}\ns_add_u32 s{sR}, s{sR}, 1\nv_writelane_b32 v{vSTP}, s{sR}, {k}")
    stubs(loads(sR)); stubs("s_waitcnt vmcnt(0)"); stubs(check)
    if pre: stubs(pre)
    stubs(f"{branch} {R}\ns_nop 4\ns_branch {B}")
def srd(l,d,lo,n):
    l(f"s_mov_b32 s{d}, s{lo}\ns_and_b32 s{d+1}, s{lo+1}, 0xffff\ns_mov_b32 s{d+2}, {hex(n)}\ns_mov_b32 s{d+3}, 0x20000")
def bfround(l,d,sx): l(f"v_cvt_pk_bf16_f32 v{d}, v{sx}, v{sx}\nv_and_b32 v{d}, s{sHI}, v{d}")
def sprinkle(l,extra,every,start=0):
    out=P(); e=list(extra); c=0
    for i in l:
        out.append(i); c+=1
        if e and c>=start and (c-start)%every==0 and i.tag!='glue':
            x=e.pop(0); out.append(x)
            while x.tag=='glue': x=e.pop(0); out.append(x)
    out.extend(e); return out
vTID,vLANE=64,65
vROW=24; vPAR=32; vWL=40; vIDX=100; vPZ=116; vFL=120; vXG=124
def conv_addr(l,st,t0,t1,t2,layer):
    l(f"""s_lshr_b32 s{st}, s{sWV}, 1
    s_and_b32 s{st+1}, s{sWV}, 1
    s_lshl_b32 s{st+1}, s{st+1}, 8
    s_mul_i32 s{st+2}, s{st}, 33280
    s_add_u32 s{st+2}, s{st+2}, s{st+1}
    s_add_u32 s{st+2}, s{st+2}, {KC+48}
    s_mul_i32 s{st}, s{st}, 4608
    s_sub_u32 s{st}, s{st}, s{st+1}
    s_add_u32 s{st}, s{st}, {U+288}
    v_bfe_u32 v{t0}, v{vT16}, 4, 1
    v_lshrrev_b32 v{t1}, 5, v{vT16}
    v_lshlrev_b32 v{vXL}, 9, v{t1}
    v_lshl_add_u32 v{vXL}, v{t0}, 3, v{vXL}
    v_lshlrev_b32 v{vSL}, 1, v{vT16}
    v_mul_u32_u24 v{vNU}, 4608, v{t0}
    v_lshl_add_u32 v{vNU}, v{t1}, 3, v{vNU}
    v_add_u32 v{vNU}, {U+512}, v{vNU}
    v_lshlrev_b32 v{t2}, 4, v{t0}
    v_sub_u32 v{t2}, 16, v{t2}
    v_lshlrev_b32_e64 v{vD}, v{t2}, s{sD}
    v_and_b32 v{vD}, s{sHI}, v{vD}""")
    done(l,f'addrN{layer}')
    l(f"""v_and_b32 v{t1}, 3, v{t1}
    v_lshrrev_b32 v{t2}, 7, v{vT16}
    v_lshlrev_b32 v{vXS}, 14, v{t2}
    v_lshl_add_u32 v{vXS}, v{t0}, 5, v{vXS}
    v_lshl_add_u32 v{vXS}, v{t1}, 3, v{vXS}
    v_lshlrev_b32 v{vER}, 13, v{t0}
    v_lshl_add_u32 v{vER}, v{t1}, 8, v{vER}
    v_lshlrev_b32 v{t1}, 2, v{t1}
    v_and_b32 v{t0}, 15, v{t2}
    v_xor_b32 v{t0}, v{t0}, v{t1}
    v_lshl_add_u32 v{vER}, v{t0}, 4, v{vER}
    v_lshrrev_b32 v{t2}, 4, v{t2}
    v_lshl_add_u32 v{vER}, v{t2}, 10, v{vER}
    v_add_u32 v{vER}, {RB}, v{vER}
    v_bfe_u32 v{t0}, v{vL8}, 3, 3
    v_mul_u32_u24 v{vCA}, 4160, v{t0}
    v_bfe_u32 v{t0}, v{vL8}, 6, 1
    v_lshrrev_b32 v{t1}, 7, v{vL8}
    v_sub_u32 v{t0}, v{t0}, v{t1}
    v_lshlrev_b32 v{t0}, 4, v{t0}
    v_add3_u32 v{vCA}, v{vCA}, v{t0}, s{st+2}
    v_bfe_u32 v{t0}, v{vL8}, 3, 4
    v_lshlrev_b32 v{t0}, 5, v{t0}
    v_lshlrev_b32 v{t1}, 4, v{t1}
    v_add3_u32 v{vCB}, v{t0}, v{t1}, s{st}""")
    done(l,f'addrC{layer}')
def g2_addr(l,st,t0,t1,layer):
    l(f"""s_lshl_b32 s{st}, s{sCB}, 11
    s_lshl_b32 s{st+1}, s{sWV}, 3
    s_add_u32 s{st}, s{st}, s{st+1}
    s_lshl_b32 s{st+1}, s{sWV}, 6
    v_and_b32 v{t0}, 0xf0, v{vL16}
    v_xor_b32 v{t0}, s{st+1}, v{t0}""")
    if layer==0:
        l(f"""v_lshl_add_u32 v{vRES}, v{vL16}, 1, s{st}
        s_lshl_b32 s{st+1}, s{sWV}, 8
        s_add_u32 s{st+1}, s{st+1}, {RB}
        v_lshrrev_b32 v{t1}, 8, v{vL16}
        v_lshlrev_b32 v{t1}, 10, v{t1}
        v_add3_u32 v{vRR}, v{t0}, v{t1}, s{st+1}
        v_lshrrev_b32 v{t0}, 8, v{vL16}
        v_lshlrev_b32 v{t0}, 4, v{t0}
        v_bfe_u32 v{t1}, v{vL16}, 7, 1
        v_lshl_add_u32 v{t0}, v{t1}, 2, v{t0}
        v_bfe_u32 v{t1}, v{vL16}, 4, 1
        v_lshl_add_u32 v{t0}, v{t1}, 3, v{t0}
        v_mov_b32 v{t1}, {OOB}
        s_mov_b32 s{st}, 0x01030103
        s_mov_b32 s{st+1}, s{st}
        v_cndmask_b32 v{vST}, v{t1}, v{t0}, s[{st}:{st+1}]""")
    else:
        l(f"""v_lshrrev_b32 v{t1}, 6, v{vL16}
        v_lshl_add_u32 v{vRR}, v{t1}, 8, v{t0}
        v_add_u32 v{vRR}, {RB}, v{vRR}
        v_lshlrev_b32 v{vST}, 3, v{t1}
        v_bfe_u32 v{t0}, v{vL16}, 4, 2
        v_lshl_add_u32 v{vST}, v{t0}, 10, v{vST}
        v_and_b32 v{t1}, 3, v{t1}
        v_lshl_add_u32 v{t0}, v{t0}, 2, v{t1}
        v_lshrrev_b32 v{t1}, 8, v{vL16}
        v_lshl_add_u32 v{t0}, v{t1}, 4, v{t0}
        v_lshl_add_u32 v{vRES}, v{t0}, 5, s{st}""")
    done(l,f'addrG{layer}')
def nomarks(l): return P([i for i in l if i.kind!='mark'])
def phaseP():
    p=P()
    p(f"""s_cmp_ge_u32 s2, 256
    s_cbranch_scc1 Lend
    {'s_memrealtime s[92:93]' if 'probe' in CFG else ''}
    s_load_dwordx16 s[32:47], s[0:1], 0
    s_load_dwordx8 s[48:55], s[0:1], 64
    s_load_dwordx2 s[56:57], s[0:1], 96
    s_getpc_b64 s[58:59]
    v_mov_b32 v{vTID}, v0
    v_lshrrev_b32 v12, 6, v0
    v_and_b32 v{vLANE}, 63, v0
    v_readfirstlane_b32 s{sWV}, v12
    s_lshr_b32 s{sT}, s2, 3
    s_mul_i32 s{sT}, s{sT}, 10
    v_min_u32 v16, 9, v{vLANE}
    v_add_lshl_u32 v16, v16, s{sT}, 7
    v_min_u32 v16, CODESZ, v16
    s_cmp_lg_u32 s{sWV}, 3
    s_cbranch_scc1 Lnopf
    global_load_dword v66, v16, s[58:59] ; skip
    Lnopf:
    v_lshlrev_b32 v{vT16}, 4, v0
    v_lshlrev_b32 v{vL16}, 4, v{vLANE}
    v_lshlrev_b32 v{vL8}, 3, v{vLANE}
    s_and_b32 s{sT}, s2, 7
    s_lshr_b32 s{sT+1}, s2, 3
    s_lshl_b32 s{sCP}, s{sT}, 5
    s_add_u32 s{sCP}, s{sCP}, s{sT+1}
    s_and_b32 s{sT+1}, s{sT+1}, 3
    s_lshl_b32 s{sRB}, s{sT}, 2
    s_add_u32 s{sRB}, s{sRB}, s{sT+1}
    s_lshr_b32 s{sCB}, s2, 5
    s_mov_b32 s{sHI}, 0xffff0000
    s_mov_b32 s{sSPIN}, 100000
    s_nop 0""")
    LA=newlab('w2'); LB=newlab('wj'); LC=newlab('w3')
    w=sB
    p(f"""s_and_b32 s{sT}, s{sWV}, 1
    s_lshl_b32 s{sT+1}, s{sRB}, 1
    s_add_u32 s{sT}, s{sT}, s{sT+1}
    s_mul_i32 s{w+1}, s{sWV}, 5120
    s_add_u32 s{w+1}, s{w+1}, {WST}
    s_cmp_ge_u32 s{sWV}, 2
    s_cbranch_scc1 {LA}
    s_lshr_b32 s{sT+1}, s{sT}, 4
    s_lshl_b32 s{sT+2}, s{sT+1}, 2
    s_xor_b32 s{sT+2}, s{sT+2}, s{sT}
    s_and_b32 s{sT+2}, s{sT+2}, 15
    s_mul_i32 s{sT+2}, s{sT+2}, {32*2752}
    s_mul_i32 s{sT+3}, s{sCB}, 344
    s_add_u32 s{sT+2}, s{sT+2}, s{sT+3}
    s_mul_i32 s{sT+3}, s{sT+1}, 88
    s_add_u32 s{sT+2}, s{sT+2}, s{sT+3}
    s_lshl_b32 s{w}, s{sCB}, 6
    s_add_u32 s{w}, s{w}, s{sT}
    s_mul_i32 s{w}, s{w}, 3072
    s_add_u32 s{w}, s{w}, {W1F}
    s_mov_b32 s{w+7}, {OOB}
    s_mov_b32 s{w+6}, 0
    s_mov_b32 s{w+2}, 0xf000f000
    s_mov_b32 s{w+3}, 0xf000f000
    s_cmp_eq_u32 s{sT+1}, 3
    s_cselect_b32 s{w+4}, 0x0f000f00, 0
    s_mov_b32 s{w+5}, s{w+4}""")
    for i in range(3):
        p(f"""v_add_u32 v20, {64*i}, v{vLANE}
        v_mul_u32_u24 v21, 171, v20
        v_lshrrev_b32 v21, 10, v21
        v_lshlrev_b32 v20, 4, v20
        v_mul_u32_u24 v22, {2752-96}, v21
        v_add3_u32 v{132+i}, v22, v20, s{sT+2}
        v_lshlrev_b32 v22, 6, v21
        v_add3_u32 v{140+i}, v22, v20, s{w+1}""")
    p(f"""v_mov_b32 v135, {OOB}
    v_mov_b32 v143, {DUM}
    s_branch {LB}
    {LA}:
    s_mul_i32 s{sT+1}, s{sT}, 187
    s_lshr_b32 s{sT+1}, s{sT+1}, 11
    s_mul_i32 s{sT+2}, s{sT+1}, 11
    s_sub_u32 s{sT+2}, s{sT}, s{sT+2}
    s_mul_i32 s{w}, s{sCB}, 44
    s_add_u32 s{w}, s{w}, s{sT}
    s_lshl_b32 s{w}, s{w}, 12
    s_add_u32 s{w}, s{w}, {W2F}
    s_cmp_ge_u32 s{sT}, 44
    s_cselect_b32 s{w+7}, {OOB}, 0
    s_mov_b32 s{w+6}, s{w+7}
    s_mov_b64 s[{w+2}:{w+3}], 0
    s_mov_b64 s[{w+4}:{w+5}], 0
    s_mul_i32 s{sT+1}, s{sT+1}, {344*1024}
    s_lshl_b32 s{sT+3}, s{sCB}, 7
    s_add_u32 s{sT+1}, s{sT+1}, s{sT+3}
    v_lshrrev_b32 v20, 3, v{vLANE}
    v_and_b32 v21, 0x70, v{vL16}
    v_mul_u32_u24 v22, 160, v20
    v_add3_u32 v140, v22, v21, s{w+1}
    v_add_u32 v141, 1280, v140
    v_add_u32 v142, 2560, v140
    v_add_u32 v143, 3840, v140
    s_cmp_ge_u32 s{sT+2}, 8
    s_cbranch_scc1 {LC}
    s_lshr_b32 s{sT+3}, s{sT+2}, 2
    s_mul_i32 s{sT+3}, s{sT+3}, {172*1024}
    s_and_b32 s{sT+2}, s{sT+2}, 3
    s_mul_i32 s{sT+2}, s{sT+2}, {44*1024}
    s_add_u32 s{sT+1}, s{sT+1}, s{sT+3}
    s_add_u32 s{sT+1}, s{sT+1}, s{sT+2}
    v_lshlrev_b32 v22, 10, v20
    v_add3_u32 v132, v22, v21, s{sT+1}
    v_add_u32 v133, 0x2000, v132
    v_add_u32 v134, 0x4000, v132
    v_add_u32 v135, 0x6000, v132
    s_branch {LB}
    {LC}:
    s_sub_u32 s{sT+2}, s{sT+2}, 8
    s_lshl_b32 s{sT+2}, s{sT+2}, 3
    v_and_b32 v22, 3, v20
    v_lshlrev_b32 v22, 10, v22
    v_add3_u32 v21, v21, v22, s{sT+1}
    v_lshrrev_b32 v20, 2, v20
    v_add_u32 v20, s{sT+2}, v20
    v_mov_b32 v57, 0x100000""")
    for i in range(4):
        p(f"""v_add_u32 v22, {2*i}, v20
        v_mul_u32_u24 v23, 43, v22
        v_lshrrev_b32 v23, 7, v23
        v_lshrrev_b32 v56, 2, v23
        v_lshl_add_u32 v23, v23, 3, v22
        v_sub_u32 v23, v23, v56
        v_lshl_add_u32 v23, v23, 2, 32
        v_mul_u32_u24 v56, 12, v56
        v_sub_u32 v22, v22, v56
        v_cmp_eq_u32 vcc, 11, v22
        v_cndmask_b32 v23, v23, v57, vcc
        v_lshl_add_u32 v{132+i}, v23, 10, v21""")
    p(f"{LB}:")
    p(f"""s_cmp_eq_u32 s2, 0
    s_cselect_b32 s{sT+4}, 0, {OOB}
    v_mov_b32 v{vPZ}, -1
    v_mov_b32 v{vPZ+1}, -1
    v_mov_b32 v{vPZ+2}, -1
    v_mov_b32 v{vPZ+3}, -1
    v_lshlrev_b32 v14, 7, v0
    v_or_b32 v14, s{sT+4}, v14
    v_mov_b32 v15, 0
    v_mov_b32 v{vSTP}, 0
    s_lshl_b32 s{sPZ2}, s2, 13
    s_lshl_b32 s{sT+1}, s{sWV}, 11
    s_add_u32 s{sT}, s{sPZ2}, s{sT+1}
    s_lshr_b32 s{sT+1}, s{sWV}, 1
    s_lshl_b32 s{sT+1}, s{sT+1}, 12
    s_and_b32 s{sT+2}, s{sWV}, 1
    s_lshl_b32 s{sT+2}, s{sT+2}, 9
    s_add_u32 s{sT+1}, s{sT+1}, s{sT+2}
    s_add_u32 s{sT+1}, s{sT+1}, s{sPZ2}
    v_lshlrev_b32 v13, 2, v{vLANE}
    s_mov_b32 s{sT+5}, {CNT}""")
    stamp(p,'start')
    srd(p,sWS,56,WSN)
    if 'probe' in CFG: p("s_mov_b32 s68, s92")
    p(f"buffer_store_dword v15, v14, {WS}, s{sT+5} offen sc1",'init')
    srd(p,sX,32,0x200000)
    p(f"""buffer_load_dwordx4 {v(vROW,4)}, v{vL16}, s[{sX}:{sX+3}], s{sT} offen
    buffer_load_dwordx4 {v(vROW+4,4)}, v{vL16}, s[{sX}:{sX+3}], s{sT} offen offset:1024""")
    for c in range(2):
        for r in range(4): p(f"buffer_load_dword v{vXG+4*c+r}, v13, s[{sX}:{sX+3}], s{sT+1} offen offset:{r*1024+c*256}")
    p(f"""s_lshl_b32 s{sT}, s{sCP}, 9
    v_lshl_add_u32 v12, v{vTID}, 1, s{sT}
    global_load_ushort v{vPAR}, v12, s[34:35]
    global_load_ushort v{vPAR+1}, v12, s[36:37]
    global_load_ushort v{vPAR+2}, v12, s[38:39]
    global_load_ushort v{vPAR+3}, v12, s[40:41]
    v_lshrrev_b32 v12, 7, v12
    v_and_b32 v12, -2, v12
    global_load_ushort v{vPAR+4}, v12, s[42:43]
    s_lshl_b32 s{sT}, s{sCP}, 2
    v_mov_b32 v12, s{sT}
    global_load_dword v{vPAR+5}, v12, s[44:45]""")
    stamp(p,'p loads1')
    srd(p,sOUT,52,0x200000); srd(p,sDBG,54,256)
    p(f"""s_cmp_ge_u32 s{sWV}, 2
    s_cselect_b32 s{sW}, s50, s48
    s_cselect_b32 s{sW+1}, s51, s49
    s_and_b32 s{sW+1}, s{sW+1}, 0xffff
    s_mov_b32 s{sW+2}, {512*1376*2}
    s_mov_b32 s{sW+3}, 0x20000""")
    if CFG.get('wpf',1):
        p(f"""s_and_b32 s{sT}, s{sWV}, 1
        s_lshl_b32 s{sT+1}, s2, 1
        s_add_u32 s{sT}, s{sT}, s{sT+1}
        s_mul_i32 s{sT}, s{sT}, 2752
        v_min_u32 v12, 42, v{vLANE}
        v_lshlrev_b32 v12, 6, v12
        buffer_load_dword v67, v12, s[{sW}:{sW+3}], s{sT} offen""")
    def wloads():
        for i in range(4): p(f"buffer_load_dwordx4 {v(vWL+4*i,4)}, v{132+i}, s[{sW}:{sW+3}], 0 offen")
    stamp(p,'p loads2')
    def poison(l,base,n,mul):
        l(f"s_mul_i32 s{sT+3}, s2, {mul}",'glue'); l(f"s_add_u32 s{sT+3}, s{sT+3}, {base}",'glue')
        for i in range(n):
            if i: l(f"s_add_u32 s{sT+3}, s{sT+3}, 4096",'glue')
            l(f"buffer_store_dwordx4 {v(vPZ,4)}, v{vT16}, {WS}, s{sT+3} offen sc1",'pz')
    def poisonB(l):
        poison(l,H,6,24576); poison(l,X2,2,8192)
        l(f"""v_mov_b32 v{vFL+2}, 0
        v_lshlrev_b32 v{vFL+1}, 2, v{vTID}
        v_mov_b32 v{vFL+3}, {OOB}
        v_cmp_gt_u32 vcc, 32, v{vTID}
        v_cndmask_b32 v{vFL+1}, v{vFL+3}, v{vFL+1}, vcc
        s_lshl_b32 s{sT+3}, s2, 7
        s_add_u32 s{sT+3}, s{sT+3}, {STA}""",'glue')
        l(f"buffer_store_dword v{vFL+2}, v{vFL+1}, {WS}, s{sT+3} offen sc1",'pz')
    p(f"""s_cmp_lg_u32 s2, 0
    s_cbranch_scc1 Lnoflag
    v_mov_b32 v12, 1
    v_lshlrev_b32 v13, 12, v{vLANE}
    s_lshl_b32 s{sT}, s{sWV}, 2
    .!vmkeep init
    buffer_store_dword v12, v13, s[{sDBG}:{sDBG+3}], s{sT} offen sc1 ; skip
    Lnoflag:""")
    poison(p,X1[0],2,8192)
    if CFG.get('pzb',0)==4: poisonB(p)
    stamp(p,'p poison')
    def pads(l):
        l(f"""s_mov_b64 exec, 0
        s_cmp_eq_u32 s{sWV}, 1
        s_cbranch_scc1 Lpad0
        s_cmp_eq_u32 s{sWV}, 2
        s_cbranch_scc1 Lpad1
        s_branch Lpad2
        Lpadret:
        s_mov_b64 exec, -1""")
    p(f"""s_mov_b32 s{sPL}, 0x05040100
    s_mov_b32 s{sPH}, 0x07060302
    s_mov_b32 s{sEPS}, 0x3727c5ac
    s_mov_b32 s{sNEG}, 0x80008000
    s_mov_b32 s{s8F}, 0x41000000
    s_mov_b32 s{sM1}, 0x22222222
    s_mov_b32 s{sM1+1}, 0x22222222
    s_mov_b32 s{sM2}, 0x44444444
    s_mov_b32 s{sM2+1}, 0x44444444
    s_mov_b32 s{sM3}, 0x88888888
    s_mov_b32 s{sM3+1}, 0x88888888
    s_mov_b32 s{sMC}, 0x00020002
    s_mov_b32 s{sMC+1}, 0x00020002
    s_lshl_b32 s{sTS2}, s2, 2
    s_add_u32 s{sTS2}, s{sTS2}, s{sWV}
    s_lshl_b32 s{sTS2}, s{sTS2}, 8
    s_add_u32 s{sTS2}, s{sTS2}, {TS}
    s_lshl_b32 s{sXS}, s{sCP}, 6
    s_lshl_b32 s{sXL}, s{sRB}, 14
    s_and_b32 s{sX2L}, s{sCP}, 31
    s_lshl_b32 s{sX2L}, s{sX2L}, 4
    s_lshr_b32 s{sT}, s{sCP}, 5
    s_lshl_b32 s{sT}, s{sT}, 18
    s_add_u32 s{sX2L}, s{sX2L}, s{sT}
    s_lshl_b32 s{sT}, s{sRB}, 4
    s_add_u32 s{sHL}, s{sT}, s{sWV}
    s_mul_i32 s{sHL}, s{sHL}, 11264
    s_add_u32 s{sHL}, s{sHL}, {H}
    s_lshr_b32 s{sT+1}, s{sCB}, 1
    s_add_u32 s{sT}, s{sT}, s{sT+1}
    s_mul_i32 s{sT}, s{sT}, 11264
    s_add_u32 s{sT}, s{sT}, {H}
    s_and_b32 s{sT+1}, s{sCB}, 1
    s_lshl_b32 s{sT+1}, s{sT+1}, 2
    s_add_u32 s{sT+1}, s{sT+1}, s{sWV}
    s_lshl_b32 s{sHS}, s{sT+1}, 10
    s_add_u32 s{sHS}, s{sHS}, s{sT}
    s_mul_i32 s{sHS2}, s{sT+1}, 384
    s_add_u32 s{sHS2}, s{sHS2}, s{sT}
    s_add_u32 s{sHS2}, s{sHS2}, 8192
    s_lshl_b32 s{sT}, s{sRB}, 2
    s_add_u32 s{sT}, s{sT}, s{sWV}
    s_lshl_b32 s{sSTA}, s{sT}, 6
    s_add_u32 s{sSTA}, s{sSTA}, {STA}
    s_lshl_b32 s{sX2S}, s{sT}, 9
    s_lshl_b32 s{sT}, s{sT}, 12
    s_lshl_b32 s{sT+1}, s{sCB}, 7
    s_add_u32 s{sOB}, s{sT}, s{sT+1}
    s_lshl_b32 s{sT+1}, s{sCB}, 18
    s_add_u32 s{sX2S}, s{sX2S}, s{sT+1}
    s_add_u32 s{sX2S}, s{sX2S}, {X2}
    s_lshl_b32 s{sT}, s{sCB}, 2
    s_add_u32 s{sT}, s{sT}, s{sWV}
    s_mul_i32 s{sW1}, s{sT}, {48*1024}
    s_add_u32 s{sW1}, s{sW1}, {W1F}
    s_mul_i32 s{sW2}, s{sT}, {44*1024}
    s_add_u32 s{sW2}, s{sW2}, {W2F}
    s_lshl_b32 s{sT}, s{sWV}, 12
    v_add_u32 v{vGF}, s{sT}, v{vL8}
    s_add_u32 s{sT}, s{sT}, {RB}
    v_lshrrev_b32 v12, 4, v{vLANE}
    v_lshlrev_b32 v13, 6, v12
    v_xor_b32 v13, v{vL16}, v13
    v_add_u32 v{vW}, s{sT}, v13
    v_mov_b32 v13, {OOB}
    v_cmp_gt_u32 vcc, 48, v{vLANE}
    v_cndmask_b32 v{vHS}, v13, v{vL8}, vcc
    v_bfe_u32 v13, v{vLANE}, 2, 2
    v_cmp_eq_u32 vcc, v13, v12
    s_lshl_b32 s{sT}, s{sWV}, 2
    s_add_u32 s{sT}, s{sT}, {SQ}
    v_and_b32 v13, 0xf0, v{vL16}
    v_add_u32 v13, s{sT}, v13
    v_mov_b32 v12, {DUM}
    v_cndmask_b32 v{vSQ}, v12, v13, vcc""")
    l=P(); g2_addr(l,sT,12,13,0); p.extend(nomarks(l))
    p(f"v_lshlrev_b32 v12, 3, v{vTID}\nv_mov_b32 v15, 1023\ns_mov_b32 s{sT}, {TT}")
    for i in range(15):
        d=vIDX+i
        p(f"""v_add_u32 v13, {7-i}, v12
        v_cvt_f32_i32 v14, v13
        v_cvt_pk_bf16_f32 v14, v14, 0
        v_subrev_u32 v14, {0x4300-128}, v14
        v_min_i32 v{d}, 0x80, v13
        v_max_i32 v{d}, v{d}, v14""")
        if i>7: p(f"v_cmp_gt_i32 vcc, 0, v13\nv_cndmask_b32 v{d}, v{d}, v15, vcc")
        p(f"v_lshl_add_u32 v{d}, v{d}, 2, s{sT}")
    p(f"""v_mov_b32 v14, 0
    v_and_b32 v12, 127, v{vTID}
    v_lshrrev_b32 v13, 7, v{vTID}
    v_mul_u32_u24 v13, 4608, v13
    v_lshl_add_u32 v12, v12, 2, v13
    v_add_u32 v12, {U}, v12
    ds_write_b32 v12, v14""")
    ldfl=lambda sr:f"buffer_load_dwordx4 {v(vFL,4)}, off, s[{sDBG}:{sDBG+3}], 0 sc1 ; skip"
    if CFG.get('wl',2)==1: wloads()
    stamp(p,'p pre done')
    t=72
    for r in range(2):
        for k in range(4):
            p(f"v_lshlrev_b32 v{t+2*k}, 16, v{vROW+4*r+k}\nv_and_b32 v{t+2*k+1}, s{sHI}, v{vROW+4*r+k}")
        S,Q=t+8+r,t+10+r
        p(f"v_add_f32 v{S}, v{t}, v{t+1}\nv_mul_f32 v{Q}, v{t}, v{t}\nv_fmac_f32 v{Q}, v{t+1}, v{t+1}")
        for k in range(2,8): p(f"v_add_f32 v{S}, v{S}, v{t+k}\nv_fmac_f32 v{Q}, v{t+k}, v{t+k}")
    S,Q=t+8,t+10
    p(f"""v_permlane32_swap_b32 v{S}, v{S+1}
    v_permlane32_swap_b32 v{Q}, v{Q+1}
    v_add_f32 v{S}, v{S}, v{S+1}
    v_add_f32 v{Q}, v{Q}, v{Q+1}
    v_lshrrev_b32 v{t+2}, 2, v{vLANE}
    v_permlane16_swap_b32 v{S}, v{Q}
    v_add_f32 v{S}, v{S}, v{Q}
    v_mov_b32 v{t+3}, {OOB}
    v_and_b32 v{t+4}, 31, v{vLANE}
    v_add_f32_dpp v{S}, v{S}, v{S} row_ror:8 row_mask:0xf bank_mask:0xf
    v_cmp_eq_u32 vcc, 0, v{t+4}
    s_lshl_b32 s{sT}, s2, 6
    v_add_f32_dpp v{S}, v{S}, v{S} row_half_mirror row_mask:0xf bank_mask:0xf
    v_cndmask_b32 v{t+2}, v{t+3}, v{t+2}, vcc
    s_lshl_b32 s{sT+1}, s{sWV}, 4
    v_add_f32_dpp v{S}, v{S}, v{S} quad_perm:[2,3,0,1] row_mask:0xf bank_mask:0xf
    s_add_u32 s{sT}, s{sT}, s{sT+1}
    s_add_u32 s{sT}, s{sT}, {ST0}
    v_add_f32_dpp v{S}, v{S}, v{S} quad_perm:[1,0,3,2] row_mask:0xf bank_mask:0xf
    v_mul_f32 v{t}, 0x3b000000, v{S}
    v_mul_f32 v{Q}, 0x3b000000, v{S}
    v_permlane16_swap_b32 v{t}, v{Q}
    v_fma_f32 v{Q}, -v{t}, v{t}, v{Q}
    v_max_f32 v{Q}, 0, v{Q}""")
    bfround(p,Q,Q); p(f"v_add_f32 v{Q}, s{sEPS}, v{Q}"); bfround(p,Q,Q); p(f"v_sqrt_f32 v{Q}, v{Q}"); bfround(p,Q,Q)
    p(f"v_rcp_f32 v{t+1}, v{Q}\nv_min_u32 v{t+1}, -2, v{t+1}")
    p(f"buffer_store_dwordx2 {v(t,2)}, v{t+2}, {WS}, s{sT} offen sc1",'wst')
    p(f"""s_lshr_b32 s{sT}, s{sWV}, 1
    s_lshl_b32 s{sT+1}, s2, 1
    s_add_u32 s{sT}, s{sT}, s{sT+1}
    s_lshl_b32 s{sT}, s{sT}, 9
    s_and_b32 s{sT+1}, s{sWV}, 1
    s_lshl_b32 s{sT+1}, s{sT+1}, 20
    s_add_u32 s{sT}, s{sT}, s{sT+1}
    s_add_u32 s{sT}, s{sT}, {X0}
    s_add_u32 s{sT+1}, s{sT}, 0x80000
    v_lshrrev_b32 v12, 5, v{vLANE}
    v_and_b32 v13, 0x1f0, v{vL16}
    v_lshl_add_u32 v12, v12, 18, v13""")
    for c in range(2):
        g=vXG+4*c; d=76+4*c
        p(f"""v_perm_b32 v{d}, v{g+1}, v{g}, s{sPL}
        v_perm_b32 v{d+1}, v{g+3}, v{g+2}, s{sPL}
        v_perm_b32 v{d+2}, v{g+1}, v{g}, s{sPH}
        v_perm_b32 v{d+3}, v{g+3}, v{g+2}, s{sPH}""")
        p(f"buffer_store_dwordx4 {v(d,4)}, v12, {WS}, s{sT+c} offen sc1",'wst')
    stamp(p,'p stats stored')
    p(f"s_cmp_lg_u32 s{sWV}, 0\ns_cbranch_scc1 Lnofl"); p(ldfl(0)); p("Lnofl:")
    if CFG.get('wl',2)==2: wloads()
    k=P()
    k(f"v_readfirstlane_b32 s{sD}, v{vPAR+5}")
    lA,Ai,Cr,Ci,ld=[vPAR+i for i in range(5)]
    for r in (lA,Ai,Cr,Ci,ld): k(f"v_lshlrev_b32 v{r}, 16, v{r}")
    k(f"v_mul_f32 v{lA}, 0x3fb8aa3b, v{lA}\nv_mul_f32 v{ld}, 0x3fb8aa3b, v{ld}\nv_exp_f32 v{lA}, v{lA}\nv_exp_f32 v{ld}, v{ld}")
    bfround(k,lA,lA); bfround(k,ld,ld)
    k(f"""v_mul_f32 v{lA}, v{lA}, v{ld}
    v_mul_f32 v{Ai}, v{Ai}, v{ld}
    v_add_f32 v{ld}, v{ld}, v{ld}
    v_mul_f32 v{lA}, 0xbfb8aa3b, v{lA}
    v_mul_f32 v{Ai}, 0.15915494, v{Ai}
    v_mul_f32 v{Cr}, v{Cr}, v{ld}
    v_mul_f32 v{Ci}, v{Ci}, v{ld}""")
    p.extend(k)
    def weights(p):
        for i in range(4): p(f"ds_write_b128 v{140+i}, {v(vWL+4*i,4)}")
        p(f"""v_lshrrev_b32 v136, 2, v{vLANE}
        v_mul_u32_u24 v136, 160, v136
        v_and_b32 v137, 24, v{vL8}
        v_add3_u32 v136, v136, v137, s{w+1}
        v_mov_b32 v137, 0x3f803f80
        v_or_b32 v138, s{w+6}, v{vL16}
        v_or_b32 v139, s{w+7}, v{vL16}""")
        for tt in range(4):
            for h in range(2): p(f"ds_read_b64_tr_b16 {v(vWL+4*tt+2*h,2)}, v136 offset:{tt*32+h*2560}")
        for kk in range(4):
            p(f"v_cndmask_b32 v{vWL+8+kk}, v{vWL+8+kk}, v137, s[{w+2}:{w+3}]\nv_cndmask_b32 v{vWL+8+kk}, v{vWL+8+kk}, 0, s[{w+4}:{w+5}]")
        for tt in range(4):
            p(f"buffer_store_dwordx4 {v(vWL+4*tt,4)}, v{139 if tt==3 else 138}, {WS}, s{w} offen offset:{tt*1024} sc1",'wst2')
        stamp(p,'p weights stored')
    k=P(); Z={}
    for kk,pw in enumerate([1,8,64,128,192,256]):
        d=68+2*kk; Z[pw]=d; e0,e1=12+2*(kk%2),13+2*(kk%2)
        k(f"""v_mul_f32 v{e1}, {fl(pw)}, v{Ai}
        v_mul_f32 v{e0}, {fl(pw)}, v{lA}
        v_fract_f32 v{e1}, v{e1}
        v_exp_f32 v{e0}, v{e0}
        v_cos_f32 v{d}, v{e1}
        v_sin_f32 v{d+1}, v{e1}
        v_mul_f32 v{d}, v{d}, v{e0}
        v_mul_f32 v{d+1}, v{d+1}, v{e0}""")
    k(f"""v_lshrrev_b32 v12, 7, v{vTID}
    v_lshlrev_b32 v12, 15, v12
    v_and_b32 v13, 127, v{vTID}
    v_lshl_add_u32 v12, v13, 5, v12
    v_mov_b32 v14, 1.0
    v_mov_b32 v15, 0""")
    def cmul(d,x,y):
        k(f"""v_pk_mul_f32 {v(d,2)}, {v(x,2)}, {v(y,2)} op_sel_hi:[1,0]
        v_pk_fma_f32 {v(d,2)}, {v(x,2)}, {v(y,2)}, {v(d,2)} op_sel:[1,1,0] op_sel_hi:[0,1,1] neg_lo:[0,1,0]""")
    PK=[80,88]; tv=[16,18,20,22]
    def pack(pk,i,x,y,neg):
        n='-' if neg else ''
        k(f"v_cvt_pk_bf16_f32 v{pk+i}, v{x}, v{y}\nv_cvt_pk_bf16_f32 v{pk+4+i}, {n}v{x+1}, {n}v{y+1}")
    def flush(pk,tile,half): k(f"ds_write_b128 v12, {v(pk,4)} offset:{tile*8192+half*16}\nds_write_b128 v12, {v(pk+4,4)} offset:{tile*8192+4096+half*16}")
    def chain(pk,x0,z,neg,second=None):
        cur=x0
        for i in range(4):
            if i: cmul(tv[0],cur,z); cur=tv[0]
            if i==0 and second is not None: nx=second
            else: cmul(tv[1],cur,z); nx=tv[1]
            pack(pk,i,cur,nx,neg); cur=nx
    for c,x0 in enumerate([14,Z[64],Z[128],Z[192]]):
        chain(PK[c%2],x0,Z[8],0,Z[8] if c==0 else None); flush(PK[c%2],2+(c>>1),c&1)
    chain(PK[0],Cr,Z[1],1); flush(PK[0],0,0)
    z2,z4=24,26; y=[28,30]
    cmul(z2,Z[1],Z[1]); cmul(y[0],Cr,Z[256]); cmul(z4,z2,z2)
    cmul(tv[0],y[0],z2); pack(PK[1],0,y[0],tv[0],1); cmul(tv[1],tv[0],z2); cmul(tv[0],tv[1],z2); pack(PK[1],1,tv[1],tv[0],1)
    cmul(y[1],y[0],Z[256]); cmul(tv[0],y[1],z4); pack(PK[1],2,y[1],tv[0],1)
    cmul(y[0],y[1],Z[256]); cmul(tv[0],y[0],z4); pack(PK[1],3,y[0],tv[0],1); flush(PK[1],0,1)
    cmul(y[1],y[0],Z[256]); cmul(y[0],y[1],Z[256]); pack(PK[0],0,y[1],y[0],1)
    cmul(y[1],y[0],Z[256]); cmul(y[0],y[1],Z[256]); pack(PK[0],1,y[1],y[0],1)
    cmul(y[1],y[0],Z[256]); pack(PK[0],2,y[1],y[1],1); flush(PK[0],1,0)
    ar=P()
    ar(f".!vmtag wst\ns_barrier\ns_cmp_lg_u32 s{sWV}, 0\ns_cbranch_scc1 Lnoarr")
    retry(ar,ldfl,f"v_min3_u32 v{vFL}, v{vFL}, v{vFL+1}, v{vFL+2}\nv_cmp_eq_u32 vcc, 0, v{vFL}","s_cbranch_vccnz",name='ready')
    ar(f"""v_mov_b32 v{vFL}, 1
    v_lshlrev_b32 v{vFL+1}, 11, v{vTID}
    v_mov_b32 v{vFL+2}, {OOB}
    v_cmp_gt_u32 vcc, 8, v{vTID}
    v_cndmask_b32 v{vFL+1}, v{vFL+2}, v{vFL+1}, vcc
    s_lshr_b32 s{sT+6}, s2, 3
    s_and_b32 s{sT+6}, s{sT+6}, 15
    s_lshl_b32 s{sT+6}, s{sT+6}, 7
    s_add_u32 s{sT+6}, s{sT+6}, {CNT}
    buffer_atomic_add v{vFL}, v{vFL+1}, {WS}, s{sT+6} offen sc1 ; skip
    Lnoarr:""")
    stamp(ar,'p arrived')
    cut=CFG.get('arr',170)
    wc=CFG.get('wcut',230)
    p.extend(k[:cut]); p.extend(ar)
    pb0=P()
    if CFG.get('pzb',0)==3: poisonB(pb0)
    p.extend(sprinkle(k[cut:wc],pb0,5,2)); weights(p); p.extend(k[wc:])
    bar(p)
    stamp(p,'p tables done')
    p(f"""s_and_b32 s{sT+6}, s2, 7
    s_lshl_b32 s{sT+6}, s{sT+6}, 11
    s_add_u32 s{sT+6}, s{sT+6}, {CNT}
    v_and_b32 v{vFL+1}, 15, v{vLANE}
    v_lshlrev_b32 v{vFL+1}, 7, v{vFL+1}
    s_lshr_b32 s{sT}, s{sWV}, 1
    s_lshl_b32 s{sT}, s{sT}, 15
    s_and_b32 s{sT+1}, s{sWV}, 1
    s_lshl_b32 s{sT+2}, s{sT+1}, 13
    v_add_u32 v12, s{sT}, v{vL8}
    v_add_u32 v13, s{sT+2}, v12""")
    m=P(); fr=[16,28,40,68]
    def kld(ks):
        b=fr[ks%4]
        for tt,(ad,of) in enumerate([(12,0),(12,8192),(13,16384)]):
            for h in range(2): m(f"ds_read_b64_tr_b16 {v(b+4*tt+2*h,2)}, v{ad} offset:{of+ks*1024+h*512}")
    kld(0); kld(1)
    for ks in range(8):
        if ks+2<8: kld(ks+2)
        b=fr[ks%4]
        for tt in range(2): m(f"v_mfma_f32_16x16x32_bf16 {v(80+4*tt,4)}, {v(b+4*tt,4)}, {v(b+8,4)}, {'0' if ks==0 else v(80+4*tt,4)}")
    p.extend(m)
    ldc=lambda sr:f"buffer_load_dword v{vFL}, v{vFL+1}, {WS}, s{sT+6} offen sc1 ; skip"
    if CFG.get('early',1): p(f"s_cmp_lg_u32 s{sWV}, 0\ns_cbranch_scc1 Lnopoll0"); p(ldc(0)); p("Lnopoll0:")
    p(f"""s_lshl_b32 s{sT+1}, s{sT+1}, 4
    s_and_b32 s{sT}, s{sWV}, 2
    s_add_u32 s{sT}, s{sT}, {TT}
    v_and_b32 v13, 15, v{vLANE}
    v_lshrrev_b32 v14, 4, v{vLANE}
    v_add_u32 v13, s{sT+1}, v13
    v_max_u32 v15, 1, v14
    v_sub_u32 v15, 4, v15
    v_lshlrev_b32 v15, v15, v13
    v_lshlrev_b32 v16, 2, v14
    v_lshlrev_b32 v17, 7, v14
    v_cmp_gt_u32 vcc, 2, v14
    v_cndmask_b32 v16, v17, v16, vcc
    v_add_u32 v15, v15, v16
    v_lshl_add_u32 v15, v15, 2, s{sT}
    v_cmp_eq_u32 vcc, 3, v14
    v_mov_b32 v16, 8
    v_mov_b32 v18, 0x100
    v_cndmask_b32 v16, v16, v18, vcc
    v_add_u32 v16, v16, v15
    v_add_u32 v17, v17, v13
    v_lshl_add_u32 v17, v17, 2, s{sT}
    v_cmp_eq_u32 vcc, 63, v{vLANE}
    v_cvt_pk_bf16_f32 v80, v80, v81
    v_cvt_pk_bf16_f32 v82, v82, v83
    v_cvt_pk_bf16_f32 v84, v84, v85
    v_cvt_pk_bf16_f32 v86, v86, v87
    v_cndmask_b32 v86, v86, 0, vcc
    ds_write_b16 v15, v80
    ds_write_b16_d16_hi v15, v80 offset:4
    ds_write_b16 v16, v82
    ds_write_b16_d16_hi v16, v82 offset:4
    ds_write_b16 v17, v84 offset:2048
    ds_write_b16_d16_hi v17, v84 offset:{2048+128}
    ds_write_b16 v17, v86 offset:{2048+256}
    ds_write_b16_d16_hi v17, v86 offset:{2048+384}
    v_mov_b32 v12, 0""")
    l=P(); conv_addr(l,sT,18,19,20,0); p.extend(nomarks(l))
    def xwait():
        p(f"s_cmp_lg_u32 s{sWV}, 0\ns_cbranch_scc1 Lnopoll")
        if not CFG.get('early',1): p(ldc(0))
        retry(p,ldc,f"v_cmp_gt_u32 vcc, 16, v{vFL}","s_cbranch_vccnz",name='bar0')
        p("s_branch Lpolled\nLnopoll:")
        if CFG.get('pad',3)==3: pads(p)
        p("Lpolled:")
    p(".!vmtag wst2"); bar(p)
    p(f"""v_mov_b32 v{vFL+2}, 1
    v_mov_b32 v{vFL+3}, {OOB}
    v_cmp_eq_u32 vcc, 0, v{vTID}
    v_cndmask_b32 v{vFL+3}, v{vFL+3}, 0, vcc
    s_lshl_b32 s{sT+7}, s{sCB}, 7
    s_add_u32 s{sT+7}, s{sT+7}, {CNW}
    buffer_atomic_add v{vFL+2}, v{vFL+3}, {WS}, s{sT+7} offen sc1""")
    stamp(p,'p ktable done')
    E=24
    for i in range(15): p(f"ds_read_b32 v{E+i}, v{vIDX+i}")
    p(f"""v_lshrrev_b32 v13, 2, v{vLANE}
    v_mul_u32_u24 v13, 4160, v13
    v_and_b32 v14, 3, v{vLANE}
    v_lshl_add_u32 v13, v14, 2, v13
    v_add_u32 v13, {KC}, v13
    v_add_u32 v14, {KC}, v{vT16}
    ds_write_b32 v13, v12""")
    def xbar():
        xwait(); p("s_barrier")
        stamp(p,'p bar0')
        for q in range(4):
            p(f"s_add_u32 s{sT}, s{sX2L}, {X0+q*0x10000}\nbuffer_load_dwordx2 {v(LAND+2*q,2)}, v{vXL}, {WS}, s{sT} offen sc1")
            if q<3: p(ldst0(q)(sT))
    x=P(); q=0
    for ch in range(2):
        sel=sPL if ch==0 else sPH
        for j0 in range(8):
            d=(40,44,48,52,100,104,108,112)[q%8]; q+=1
            for kk in range(4):
                i=7-j0+2*kk
                x(f"v_perm_b32 v{d+kk}, v{E+i+1}, v{E+i}, s{sel}")
            x(f"ds_write_b128 v14, {v(d,4)} offset:{ch*33280+j0*4160+16}")
    xc=5*CFG.get('exp',0)
    p.extend(x[:xc]); xbar()
    pb=P(); poisonB(pb)
    ldw=lambda sr:f"buffer_load_dword v{tB+1}, off, {WS}, s{sT+7} sc1"
    if CFG.get('pzb',0)==0: p.extend(sprinkle(x[xc:],pb,5,4)); p(ldw(0))
    elif CFG['pzb']==1: p.extend(x[xc:]); p(ldw(0)); p.extend(pb)
    elif CFG['pzb']==2: p(ldw(0)); p.extend(sprinkle(x[xc:],pb,5,4))
    else: p.extend(x[xc:xc+40]); p(ldw(0)); p.extend(x[xc+40:])
    wl=P()
    retry(wl,ldw,f"v_cmp_gt_u32 s[{sC+2}:{sC+3}], 32, v{tB+1}","s_cbranch_scc1",f"s_cmp_lg_u64 s[{sC+2}:{sC+3}], 0",name='wbar')
    stamp(wl,'p wbar')
    wl.extend(w1loads()); cut=0
    stamp(p,'p expand done')
    return p,P(wl[cut:])
def ldst0(q): return lambda sr:f"s_mov_b32 s{sr}, {ST0+q*4096}\nbuffer_load_dwordx4 {v(LAND+8+4*(q%3),4)}, v{vT16}, {WS}, s{sr} offen sc1"
def w1loads():
    l=P()
    for f in range(48):
        if f%4==0: l(f"s_add_u32 s{sC}, s{sW1}, {f*1024}",'glue')
        l(f"buffer_load_dwordx4 {W1(f//3,f%3)}, v{vL16}, {WS}, s{sC} offen offset:{(f%4)*1024} sc1")
    return l
def w2loads():
    l=P()
    for f in range(44):
        if f%4==0: l(f"s_add_u32 s{sC}, s{sW2}, {f*1024}",'glue')
        l(f"buffer_load_dwordx4 {W2(f//4,f%4)}, v{vL16}, {WS}, s{sC} offen offset:{(f%4)*1024} sc1")
    return l
def sched(out,seq,pool,late,ld,req,dist):
    where={}; free=list(pool); n=len(seq); uses={}; got=set()
    for i,x in enumerate(seq):
        uses.setdefault(x[0],[]).append(i); uses.setdefault(x[1],[]).append(i)
    def nxt(k,i):
        for u in uses[k]:
            if u>=i: return u
        return 10**9
    cnt=[0]
    def fetch(i,limit,horizon):
        c=0
        for j in range(i,min(n,horizon+1)):
            for k in seq[j][:2]:
                if k in where: continue
                if c>=limit: return
                if free: r=free.pop(0)
                else:
                    vic=max(where,key=lambda q:nxt(q,i))
                    if nxt(vic,i)<=j: return
                    r=where.pop(vic)
                t=req(k)
                if t and t not in got: need(out,t); got.add(t)
                where[k]=r; out(ld(k,r)); c+=1; cnt[0]+=1
    fetch(0,6,dist)
    for i,(ka,kb,acc,first,marks) in enumerate(seq):
        for mk in marks: out.append(mk)
        if i==late[0]:
            if late[2]: need(out,late[2])
            free.extend(late[1])
        fetch(i,99,i)
        out(f"v_mfma_f32_16x16x32_bf16 {v(acc,4)}, {v(where[ka],4)}, {v(where[kb],4)}, {'0' if first else v(acc,4)}")
        for k in (ka,kb):
            if k in where and nxt(k,i+1)>=10**9: free.append(where.pop(k))
        fetch(i+1,1,i+1+dist)
    return cnt[0]
def conv_main(m,L):
    seq=[]; seen=set()
    def add(aa,b,r,marks): seq.append((('A',aa,r),('B',b,r),TACC[aa+b],(aa+b) not in seen,marks)); seen.add(aa+b)
    for q in range(4):
        mk=[Mark('pos',f'F{q}{L}')]
        for r in range(4):
            for aa,b in ((0,2*q),(0,2*q+1),(1,2*q)): add(aa,b,r,mk); mk=[]
        mk=[Mark('pos',f'K{q}{L}')]
        if q==3: break
        for r in ((3,2,1,0)):
            add(1,2*q+1,r,mk); mk=[]
            for aa in range(2,8-2*q):
                add(aa,2*q,r,[])
                if aa+2*q+1<8: add(aa,2*q+1,r,[])
    def ld(k,r):
        if k[0]=='A': return f"ds_read_b128 {v(r,4)}, v{vCA} offset:{512*k[1]+64*k[2]}"
        return f"ds_read_b128 {v(r,4)}, v{vCB} offset:{512*k[1]+64*(3-k[2])}"
    stamp(m,f'm convpre{L}'); need(m,'G2E30') if L else None; need(m,f'N0{L}')
    if L: need(m,'addrC1')
    n=sched(m,seq,POOL,(0,POOL2,None),ld,lambda k:f'N{k[1]//2}{L}' if k[0]=='B' else None,CFG['dist'])
    pos(m,f'K3{L}'); stamp(m,f'm convend{L}'); print('conv reads',n,file=sys.stderr)
def colsum_main(m):
    m(f"v_mov_b32 v{ONES}, 0x3f803f80\nv_mov_b32 v{ONES+1}, 0x3f803f80\nv_mov_b32 v{ONES+2}, 0x3f803f80\nv_mov_b32 v{ONES+3}, 0x3f803f80")
    need(m,'W1')
    for ks in range(16):
        for t in range(3): m(f"v_mfma_f32_16x16x32_bf16 {v(vCS+4*t,4)}, {W1(ks,t)}, {v(ONES,4)}, {'0' if ks==0 else v(vCS+4*t,4)}")
    pos(m,'CSend')
def g1_main(m,L):
    def ldf(s,h):
        j,ks=divmod(s,16)
        if ks==0 and h==0: need(m,f'S{j}{L}')
        m(f"ds_read_b64_tr_b16 {v(F[s%4]+2*h,2)}, v{vGF} offset:{j*16384+(ks%4)*1024+h*512}")
        if ks%4==3 and h==1: m(f"v_xor_b32 v{vGF}, {(1 if (ks//4)%2==0 else 3)*4096}, v{vGF}")
    for s in range(3): ldf(s,0); ldf(s,1)
    for s in range(64):
        j,ks=divmod(s,16); acc=ACC[j%2]
        if ks==0:
            pos(m,f'G1_{j}{L}'); stamp(m,f'm G1_{j}{L}')
            if j>=2: need(m,f'G1E{j-2}{L}')
        for t in range(3):
            m(f"v_mfma_f32_16x16x32_bf16 {v(acc+4*t,4)}, {W1(ks,t)}, {v(F[s%4],4)}, {'0' if ks==0 else v(acc+4*t,4)}")
            if t<2 and s+3<64: ldf(s+3,t)
        if ks<4: m(f"v_mfma_f32_16x16x32_bf16 {v(acc+12,4)}, {v(F[s%4],4)}, {v(F[s%4],4)}, {'0' if ks==0 else v(acc+12,4)}")
    pos(m,f'G1_4{L}')
def g2_main(m,L):
    for j in range(4):
        acc=ACC[j%2]; b=HBUF[j%2]
        pos(m,f'G2_{j}{L}'); stamp(m,f'm G2_{j}{L}')
        need(m,f'G1E{j+2}{L}' if j<2 else f'G2E{j-2}{L}')
        if L==0 and j==0: need(m,'W2')
        for ks in range(11):
            if ks==0: need(m,f'Ha{j}{L}')
            if ks==6: need(m,f'Hb{j}{L}')
            for t in range(4):
                c='0' if ks==0 else v(acc+4*t,4)
                if L==0: m(f"v_mfma_f32_16x16x32_bf16 {v(acc+4*t,4)}, {v(b+4*ks,4)}, {W2(ks,t)}, {c}")
                else: m(f"v_mfma_f32_16x16x32_bf16 {v(acc+4*t,4)}, {W2(ks,t)}, {v(b+4*ks,4)}, {c}")
    pos(m,f'G2_4{L}')
def ldx2(q):
    s_=q%2
    return lambda sr:f"""s_add_u32 s{sr}, s{sX2L}, {X2+q*0x10000}
    buffer_load_dwordx2 {v(LAND+2*s_,2)}, v{vXL}, {WS}, s{sr} offen sc1
    s_mov_b32 s{sr}, {STA+q*8192}
    buffer_load_dwordx4 {v(LAND+4+8*s_,4)}, v{vSL}, {WS}, s{sr} offen sc1
    buffer_load_dwordx4 {v(LAND+8+8*s_,4)}, v{vSL}, {WS}, s{sr} offen offset:16 sc1 ; use Y{q}"""
def N(A,q,L):
    BASE=BASES[q%2]
    if L==0:
        xr=LAND+2*q; sb=LAND+8+4*(q%3); ma,ra,mb,rb=sb,sb+1,sb+2,sb+3; u=[tA,tA+1,tA+2,tA+3]
    else:
        xr=LAND+2*(q%2); sb=LAND+4+8*(q%2); ma,ra,mb,rb=sb,sb+1,sb+4,sb+5; u=[sb+2,sb+3,sb+6,sb+7]
        retry(A,ldx2(q),f"v_min_f32 v{sb+3}, v{sb+2}, v{sb+6}\nv_cmp_eq_u32 s[{sCK2}:{sCK2+1}], -1, v{xr}\nv_cmp_neq_f32 s[{sCK}:{sCK+1}], s{s8F}, v{sb+3}","s_cbranch_scc1",f"s_or_b64 s[{sCK}:{sCK+1}], s[{sCK}:{sCK+1}], s[{sCK2}:{sCK2+1}]",name=f'N{q}{L}')
        A(f"""v_mul_f32 v{ma}, 0x3b000000, v{ma}
        v_mul_f32 v{mb}, 0x3b000000, v{mb}
        v_fma_f32 v{u[0]}, v{ma}, v{ma}, -s{sEPS}
        v_fma_f32 v{u[1]}, v{mb}, v{mb}, -s{sEPS}
        v_fmamk_f32 v{ra}, v{ra}, 0xbb000000, v{u[0]}
        v_fmamk_f32 v{rb}, v{rb}, 0xbb000000, v{u[1]}
        v_max_f32_e64 v{ra}, -v{ra}, s{sEPS}
        v_max_f32_e64 v{rb}, -v{rb}, s{sEPS}
        v_rsq_f32 v{ra}, v{ra}
        v_rsq_f32 v{rb}, v{rb}""")
    A(f"v_lshlrev_b32 v{BASE}, 16, v{xr}\nv_and_b32 v{BASE+1}, s{sHI}, v{xr}\nv_lshlrev_b32 v{BASE+2}, 16, v{xr+1}\nv_and_b32 v{BASE+3}, s{sHI}, v{xr+1}")
    sel=[(ma,ra,'[0,0,2,2]'),(mb,rb,'[0,0,2,2]'),(ma,ra,'[1,1,3,3]'),(mb,rb,'[1,1,3,3]')]
    for e,(m_,r_,qp) in enumerate(sel): A(f"v_subrev_f32_dpp v{u[e]}, v{m_}, v{BASE+e} quad_perm:{qp} row_mask:0xf bank_mask:0xf")
    for e,(m_,r_,qp) in enumerate(sel): A(f"v_mul_f32_dpp v{u[e]}, v{r_}, v{u[e]} quad_perm:{qp} row_mask:0xf bank_mask:0xf")
    A(f"v_cvt_pk_bf16_f32 v{xr}, v{u[0]}, v{u[1]}\nv_cvt_pk_bf16_f32 v{xr+1}, v{u[2]}, v{u[3]}\nds_write_b64 v{vNU}, {v(xr,2)} offset:{q*1024}")
    for e in range(4): A(f"v_fmac_f32 v{BASE+e}, v{vD}, v{u[e]}")
    done(A,f'Nuse{q}{L}')
    bar(A,f'N{q}{L}'); done(A,f'N{q}{L}'); stamp(A,f'N{q}{L}')
def E(A,q,L):
    t=tA; o=(q%2)*2048; BASE=BASES[q%2]
    hard_at(A,f'K{q}{L}')
    A(f"ds_write_b128 v{vW}, {v(TACC[2*q],4)} offset:{o}\nds_write_b128 v{vW}, {v(TACC[2*q+1],4)} offset:{o+1024}")
    done(A,f'Ew{q}{L}'); gap(A,4)
    if q==1 and L==0: A(".!vmtag pz")
    bar(A,f'E{q}{L}')
    A(f"ds_read_b128 {v(t,4)}, v{vER} offset:{o}\nds_read_b128 {v(t+4,4)}, v{vER} offset:{o+4096}"); gap(A,5)
    for e in range(4): A(f"v_add_f32 v{BASE+e}, v{BASE+e}, v{t+e}")
    for e in range(4): A(f"v_add_f32 v{BASE+e}, v{BASE+e}, v{t+4+e}")
    A(f"""v_cvt_pk_bf16_f32 v{t+8}, v{BASE}, v{BASE+1}
    v_cvt_pk_bf16_f32 v{t+9}, v{BASE+2}, v{BASE+3}
    v_min_u32 v{t+8}, -2, v{t+8}""")
    glue(A,f"s_add_u32 s{sA}, s{sXS}, {X1[L]+q*0x80000}\nbuffer_store_dwordx2 {v(t+8,2)}, v{vXS}, {WS}, s{sA} offen sc1 ; pub X{q}{L}")
    done(A,f'E{q}{L}'); stamp(A,f'E{q}{L}')
def ldx1(j,L):
    def f(sr):
        return '\n'.join(f"s_add_u32 s{sr}, s{sXL}, {X1[L]+j*0x80000+i*4096}\nbuffer_load_dwordx4 {v(STG[j]+4*i,4)}, v{vT16}, {WS}, s{sr} offen sc1 ; use X{j}{L}" for i in range(4))
    return f
def stage(B,j,L):
    b=STG[j]
    retry(B,ldx1(j,L),f"""v_max3_u32 v{tB}, v{b}, v{b+2}, v{b+4}
    v_max3_u32 v{tB}, v{tB}, v{b+6}, v{b+8}
    v_max3_u32 v{tB}, v{tB}, v{b+10}, v{b+12}
    v_max_u32 v{tB}, v{tB}, v{b+14}
    v_cmp_eq_u32 vcc, -1, v{tB}""","s_cbranch_vccnz",name=f'S{j}{L}')
    for i in range(4): B(f"ds_write_b128 v{vT16}, {v(b+4*i,4)} offset:{j*16384+i*4096}")
    gap(B,4); bar(B,f'S{j}{L}'); done(B,f'S{j}{L}'); stamp(B,f'S{j}{L}')
def G1E(A,j,L):
    t=tA; acc=ACC[j%2]
    hard_at(A,f'G1_{j+1}{L}')
    sg=0xbb000000 if L==0 else 0x3b000000
    A(f"""v_mul_f32 v{t}, {hex(sg)}, v{acc+8}
    v_mul_f32 v{t+1}, {hex(sg)}, v{acc+8}
    v_cndmask_b32 v{t+8}, v{acc+12}, v{acc+13}, s[{sM1}:{sM1+1}]
    v_permlane32_swap_b32 v{t}, v{t+1}
    v_cndmask_b32 v{t+8}, v{t+8}, v{acc+14}, s[{sM2}:{sM2+1}]
    v_mov_b32 v{t}, v{t+1}
    v_cndmask_b32 v{t+8}, v{t+8}, v{acc+15}, s[{sM3}:{sM3+1}]
    s_add_u32 s{sA}, s{sHS}, {j*4*11264}
    v_permlane16_swap_b32 v{t}, v{t+1}""")
    for k in range(12):
        if L==0: A(f"v_fmac_f32 v{acc+k}, v{t+1}, v{vCS+k}")
        else: A(f"v_fma_f32 v{acc+k}, v{t+1}, v{vCS+k}, -v{acc+k}")
        if k%2:
            A(f"v_cvt_pk_bf16_f32 v{t+2+k//2}, v{acc+k-1}, v{acc+k}")
            A(f"v_pk_max_i16 v{t+2+k//2}, v{t+2+k//2}, 0" if L==0 else f"v_pk_max_u16 v{t+2+k//2}, v{t+2+k//2}, s{sNEG}")
        if k==7: A(f"buffer_store_dwordx4 {v(t+2,4)}, v{vL16}, {WS}, s{sA} offen sc1\ns_add_u32 s{sA}, s{sHS2}, {j*4*11264}")
    done(A,f'cs{j}{L}')
    A(f"""buffer_store_dwordx2 {v(t+6,2)}, v{vHS}, {WS}, s{sA} offen sc1 ; pub H{j}{L}
    ds_write_b32 v{vSQ}, v{t+8} offset:{j*256}
    ds_write_b32 v{vSQ}, v{t+1} offset:{1024+j*256}""")
    done(A,f'G1E{j}{L}'); stamp(A,f'G1E{j}{L}')
def rcomp(A,L):
    t=tA
    A(f"""s_lshl_b32 s{sA}, s{sWV}, 6
    s_add_u32 s{sA}, s{sA}, {SQ}
    v_bfe_u32 v{t}, v{vL16}, 6, 2
    v_and_b32 v{t+1}, 48, v{vL16}
    v_lshlrev_b32 v{t}, 8, v{t}
    v_add3_u32 v{t}, v{t}, v{t+1}, s{sA}""")
    bar(A)
    A(f"ds_read_b128 {v(t+2,4)}, v{t}\nds_read_b32 v{t+1}, v{t} offset:1024"); gap(A,4)
    A(f"""v_add_f32 v{t+2}, v{t+2}, v{t+3}
    v_add_f32 v{t+4}, v{t+4}, v{t+5}
    v_mul_f32 v{t+1}, v{t+1}, v{t+1}
    v_add_f32 v{t+2}, v{t+2}, v{t+4}
    v_fmamk_f32 v{t+1}, v{t+2}, 0xbb000000, v{t+1}
    v_min_f32 v{t+1}, 0, v{t+1}
    v_sub_f32 v{t+1}, s{sEPS}, v{t+1}
    v_rsq_f32 v{vR}, v{t+1}""")
    if L: A(f"v_sub_f32 v{vR}, 0, v{vR}")
def ldh(j,ks,sr,setup,L=''):
    b=HBUF[j%2]; x=''
    if setup: x=f"s_add_u32 s{sr}, s{sHL}, {j*4*11264+(ks//4)*4096}\n"
    if ks<8: return x+f"buffer_load_dwordx4 {v(b+4*ks,4)}, v{vL16}, {WS}, s{sr} offen offset:{(ks%4)*1024} sc1 ; use H{j}{L}"
    return x+'\n'.join(f"buffer_load_dwordx2 {v(b+4*ks+2*h,2)}, v{vL8}, {WS}, s{sr} offen offset:{(ks%4)*1024+h*512} sc1" for h in range(2))
def hcheck(B,j,half,L):
    b=HBUF[j%2]; kss=range(0,6) if half==0 else range(6,11)
    rs=[]
    for ks in kss: rs+= [b+4*ks] if ks<8 else [b+4*ks,b+4*ks+2]
    op3=(lambda d,x,y,z:f"v_or3_b32 v{d}, v{x}, v{y}, v{z}") if L==0 else (lambda d,x,y,z:f"v_bitop3_b32 v{d}, v{x}, v{y}, v{z} bitop3:0x80")
    c=[op3(tB,rs[0],rs[1],rs[2])]; rs=rs[3:]
    while len(rs)>=2: c.append(op3(tB,tB,rs[0],rs[1])); rs=rs[2:]
    if rs: c.append(f"v_{'or' if L==0 else 'and'}_b32 v{tB}, v{tB}, v{rs[0]}")
    c.append(f"v_cmp_{'gt' if L==0 else 'le'}_i32 vcc, 0, v{tB}")
    retry(B,lambda sr:'\n'.join(ldh(j,ks,sr,ks%4==0 or ks==kss[0]) for ks in kss),'\n'.join(c),"s_cbranch_vccnz",name=f"H{'ab'[half]}{j}{L}")
    done(B,f"H{'ab'[half]}{j}{L}")
    if half==0: stamp(B,f'Ha{j}{L}')
def G2E(A,j,L):
    t=tA; acc=ACC[j%2]
    hard_at(A,f'G2_{j+1}{L}')
    for tt in range(4): A(f"ds_write_b128 v{vW}, {v(acc+4*tt,4)} offset:{tt*1024}")
    if j==0: after(A,f'addrG{L}') if L else None
    A(f"{'ds_read_b64' if L==0 else 'ds_read_b64_tr_b16'} {v(t,2)}, v{vRES} offset:{j*16384}")
    if L: A(f"v_bfe_u32 v{t+8}, v{vL16}, 2, 4\nds_bpermute_b32 v{t+8}, v{t+8}, v{vR} offset:{16*j}")
    else:
        for e in range(4): A(f"v_readlane_b32 s{sA+2+e}, v{vR}, {4*j+e}")
    gap(A,2); bar(A,f'G{j}{L}')
    for sw in range(4): A(f"ds_read_b128 {v(acc+4*sw,4)}, v{vRR} offset:{sw*4096}")
    A(f"v_lshlrev_b32 v{t+2}, 16, v{t}\nv_and_b32 v{t+3}, s{sHI}, v{t}\nv_lshlrev_b32 v{t+4}, 16, v{t+1}\nv_and_b32 v{t+5}, s{sHI}, v{t+1}")
    gap(A,3)
    for e in range(4): A(f"v_add_f32 v{acc+e}, v{acc+e}, v{acc+4+e}")
    for e in range(4): A(f"v_add_f32 v{acc+8+e}, v{acc+8+e}, v{acc+12+e}")
    if not(L and j==3): A("s_barrier")
    for e in range(4): A(f"v_add_f32 v{acc+e}, v{acc+e}, v{acc+8+e}")
    for e in range(4): A(f"v_fmac_f32 v{t+2+e}, {('s%d'%(sA+2+e)) if L==0 else 'v%d'%(t+8)}, v{acc+e}")
    A(f"v_cvt_pk_bf16_f32 v{t+6}, v{t+2}, v{t+3}\nv_cvt_pk_bf16_f32 v{t+7}, v{t+4}, v{t+5}")
    if L==0:
        x=t+2; q=acc
        A(f"""v_min_u32 v{t+6}, -2, v{t+6}
        s_add_u32 s{sA}, s{sX2S}, {j*0x10000}
        buffer_store_dwordx2 {v(t+6,2)}, v{vL8}, {WS}, s{sA} offen sc1
        v_mul_f32 v{q}, v{x}, v{x}
        v_mul_f32 v{q+1}, v{x+1}, v{x+1}
        v_mul_f32 v{q+2}, v{x+2}, v{x+2}
        v_mul_f32 v{q+3}, v{x+3}, v{x+3}
        v_permlane32_swap_b32 v{x}, v{x+2}
        v_permlane32_swap_b32 v{x+1}, v{x+3}
        v_permlane32_swap_b32 v{q}, v{q+2}
        v_permlane32_swap_b32 v{q+1}, v{q+3}
        v_add_f32 v{x}, v{x}, v{x+2}
        v_add_f32 v{x+1}, v{x+1}, v{x+3}
        v_add_f32 v{q}, v{q}, v{q+2}
        v_add_f32 v{q+1}, v{q+1}, v{q+3}
        v_permlane16_swap_b32 v{x}, v{x+1}
        v_permlane16_swap_b32 v{q}, v{q+1}
        v_add_f32 v{x}, v{x}, v{x+1}
        v_add_f32 v{q}, v{q}, v{q+1}
        s_add_u32 s{sA}, s{sSTA}, {j*8192}
        v_add_f32_dpp v{x}, v{x}, v{x} row_ror:8 row_mask:0xf bank_mask:0xf
        v_add_f32_dpp v{x}, v{q}, v{q} row_ror:8 row_mask:0xf bank_mask:0xc
        v_add_f32_dpp v{x}, v{x}, v{x} row_half_mirror row_mask:0xf bank_mask:0xf
        v_add_f32_dpp v{x}, v{x}, v{x} quad_perm:[2,3,0,1] row_mask:0xf bank_mask:0xf
        v_add_f32_dpp v{x}, v{x}, v{x} quad_perm:[1,0,3,2] row_mask:0xf bank_mask:0xf
        v_cndmask_b32 v{x}, v{x}, 1.0, s[{sMC}:{sMC+1}]
        buffer_atomic_add_f32 v{x}, v{vST}, {WS}, s{sA} offen sc1 ; pub Y{j}""")
    else:
        A(f"s_add_u32 s{sA}, s{sOB}, {j*0x80000}\nbuffer_store_dwordx2 {v(t+6,2)}, v{vST}, s[{sOUT}:{sOUT+3}], s{sA} offen")
    done(A,f'G2E{j}{L}'); stamp(A,f'G2E{j}{L}')
def glue(l,text):
    for x in text.strip().split('\n'):
        x=x.strip(); l(x,'glue' if x.startswith('s_') else None)
def atc(l,c,L): at(l,c[0]+str(L),c[1])
p,w1rest=phaseP()
M=P(); A=P(); B=P(); C=P()
for L in range(2):
    conv_main(M,L)
    if L==0: colsum_main(M)
    g1_main(M,L); g2_main(M,L)
W=CFG['W']
def w_(l,key,L): nm,a_,b_=W[key+str(L)] if key+str(L) in W else W[key]; win(l,nm if nm[-1]=='!' else nm+str(L),a_,b_)
D=P(); B2=P()
for L in range(2):
    if L==0:
        win(A,'F00',0,0); N(A,0,0); w_(A,'N1',0); N(A,1,0)
    for q in range(4):
        w_(A,f'E{q}',L); E(A,q,L)
        if L==0 and q<2:
            w_(A,f'N{q+2}',0)
            if q==1: after(A,'Nld30')
            N(A,q+2,0)
    w_(A,'cs',L)
    if L==0: hard_at(A,'CSend')
    A(f"s_mul_i32 s{sA}, s{sWV}, 192\ns_add_u32 s{sA}, s{sA}, {CSL}\nv_lshrrev_b32 v{tA}, 8, v{vL16}\nv_lshl_add_u32 v{tA}, v{tA}, 4, s{sA}")
    for t in range(3): A(f"ds_write_b128 v{tA}, {v(vCS+4*t,4)} offset:{t*64}" if L==0 else f"ds_read_b128 {v(vCS+4*t,4)}, v{tA} offset:{t*64}")
    for j in range(4):
        w_(A,f'G1E{j}',L)
        if j==0: after(A,f'S1{L}')
        G1E(A,j,L)
    w_(A,'rc',L); rcomp(A,L)
    for j in range(4): w_(A,f'G2E{j}',L); G2E(A,j,L)
for q in range(4):
    w_(D,f'N{q}',1); after(D,f'Nld{q}1')
    if q>=2: after(D,f'E{q-2}1')
    N(D,q,1)
for L in range(2):
    ev=[]
    if L==0: w_(B,'nld3',0); after(B,'Nuse00'); glue(B,ldst0(3)(sB)); done(B,'Nld30')
    else:
        for q in (2,3): w_(B,f'nld{q}',1); after(B,f'Nuse{q-2}1'); glue(B,ldx2(q)(sB)); done(B,f'Nld{q}1')
    for j in range(4):
        w_(B,f'xld{j}',L); after(B,[f'Ew1{L}',f'Nuse3{L}',f'Ew3{L}',f'E3{L}'][j])
        if j==3 and L==0: hard_at(B,'CSend')
        glue(B,ldx1(j,L)(sB)); done(B,f'xld{j}{L}')
        w_(B2,f'S{j}',L); after(B2,f'xld{j}{L}'); stage(B2,j,L)
    for j in range(4):
        for part,kss in ((('a',range(0,6)),('b',range(6,11))) if j!=1 else (('a',range(0,4)),('b',range(4,8)),('c',range(8,11)))):
            w_(B,f'hld{j}{part}',L)
            if j==0:
                after(B,f'S1{L}' if part=='a' else f'S3{L}')
                if L: after(B,'addrG1')
            if j==1:
                if part=='a': after(B,f'S2{L}'); after(B,'PZ')
                if part=='b': hard_at(B,f'G2_0{L}')
                if part=='c': after(B,f'cs3{L}')
            for ks in kss:
                if j>=2: hard_at(B,f'G2_{j-2}{L}',4*ks+4)
                glue(B,ldh(j,ks,sB,ks%4==0 or ks==kss[0],L))
                if ks==5: done(B,f'hlda{j}{L}')
            if kss[-1]==10: done(B,f'hldb{j}{L}')
        for half in range(2):
            win(B2,f'G2_{j}{L}',24*half-CFG['hck'],24*half-1); after(B2,f"hld{'ab'[half]}{j}{L}"); hcheck(B2,j,half,L)
    if L==0:
        for q in (0,1):
            w_(B,f'nld{q}',1); hard_at(B,'G2_30'); after(B,'addrN1'); glue(B,ldx2(q)(sB)); done(B,f'Nld{q}1')
w_(C,'w1',0); C.extend(w1rest); done(C,'W1')
w_(C,'w2',0); C.extend(w2loads()); done(C,'W2')
w_(C,'pz',0); after(C,'S20')
C(f"v_mov_b32 v100, -1\nv_mov_b32 v101, -1\nv_mov_b32 v102, -1\nv_mov_b32 v103, -1")
glue(C,f"s_add_u32 s{sC}, s{sPZ}, {X1[1]}\nbuffer_store_dwordx4 v[100:103], v{vT16}, {WS}, s{sC} offen sc1\ns_add_u32 s{sC}, s{sPZ}, {X1[1]+4096}\nbuffer_store_dwordx4 v[100:103], v{vT16}, {WS}, s{sC} offen sc1")
done(C,'PZ')
w_(C,'ca',0); hard_at(C,'G2_20',44); conv_addr(C,sC,92,93,94,1)
w_(C,'ga',1); after(C,'G2E30'); after(C,'E31'); g2_addr(C,sC,56,57,1)
log=[]
body=plan(M,[A,D,B,B2,C],log)
for x in log: print(x,file=sys.stderr)
p.extend(body)
stamp(p,'end')
if STAMP: p(f"v_lshrrev_b32 v12, 1, v{vL8}\nbuffer_store_dword v{vSTP}, v12, {WS}, s{sTS} offen")
if 'probe' in CFG:
    p(f"""s_sub_u32 s97, s97, s68
    s_min_u32 s97, s97, 6000
    s_mul_i32 s97, s97, 10
    s_add_u32 s97, s97, 4000
    s_mov_b32 s96, 0
    Lspin:
    s_memrealtime s[{sST}:{sST+1}]
    s_add_u32 s96, s96, 1
    s_cmp_gt_u32 s96, 1000000
    s_cbranch_scc1 Lend
    s_sub_u32 s{sST}, s{sST}, s68
    s_cmp_lt_u32 s{sST}, s97
    s_cbranch_scc1 Lspin""")
p("Lend:\ns_endpgm\nLbail:\ns_endpgm"); p.extend(stubs); p("Lcodeend:")
out=finalize(p,CFG.get('merge',14))
if CFG.get('al',1): print('align',align32(out),file=sys.stderr)
if CFG.get('pad',3):
    sz=sizes_of(out); off=CFG.get('koff',0x300); new=[]; pads=[]; started=False
    for i,n in zip(out,sz):
        if new and new[-1].text=='s_mov_b64 exec, -1': started=True
        if i.kind=='label' and i.text=='Lend:': started=False
        prevglue=bool(new) and (new[-1].mn.startswith(('s_cmp','s_or_b64','v_cmp')) or new[-1].kind=='branch')
        if started and off//4096>len(pads)+PG0[0] and i.kind!='label' and not prevglue:
            k=len(pads); pads.append(k); new.append(I(f'Lpad{k}:')); new.append(I(f's_cbranch_execz PADNEXT{k}')); new.append(I('s_nop 0')); off+=8
        if not started and not pads: PG0[0]=off//4096
        new.append(i); off+=n
    for i in new:
        if 'PADNEXT' in i.text:
            k=int(i.text.split('PADNEXT')[1]); i.text=f"s_cbranch_execz {'Lpad%d'%(k+3) if k+3<len(pads) else 'Lpadret'}"
    out=new; print('pads',len(pads),file=sys.stderr)
ref=open(f'cdna_kernels/{NAME}.s.ref').read().split('\n')
hdr=[l for l in ref if l.startswith(';') and '@launch' not in l and 'Override' not in l and 'Harness parses' not in l]
txt='\n'.join(hdr)+f"""
; Generated by my own script: one persistent kernel (prep | conv | ffn1 | ffn2 | conv | ffn1 | ffn2).
; cfg {" ".join(sys.argv[2:])}
; @launch grid=(256,1,1) block=(256,1,1) lds={LDSN}
.amdgcn_target "amdgcn-amd-amdhsa--gfx950"
.text
.globl {NAME}_kernel
.p2align 12
.p2align 8
.type {NAME}_kernel,@function
.set CODESZ, Lcodeend-{NAME}_kernel-64
{NAME}_kernel:
"""+'\n'.join(('' if i.kind=='label' else '  ')+i.text for i in out)+f"""
.section .rodata,"a"
.p2align 6
.amdhsa_kernel {NAME}_kernel
  .amdhsa_next_free_vgpr 512
  .amdhsa_next_free_sgpr 102
  .amdhsa_accum_offset 256
  .amdhsa_group_segment_fixed_size 0
  .amdhsa_kernarg_size 104
  .amdhsa_user_sgpr_count 2
  .amdhsa_user_sgpr_kernarg_segment_ptr 1
  .amdhsa_system_sgpr_workgroup_id_x 1
.end_amdhsa_kernel
"""
lines=[i.text.split(';')[0].strip() for i in out]
if 'Lpadret:' in lines:
    assert lines[lines.index('Lpadret:')+1]=='s_mov_b64 exec, -1'
    assert sum(l=='s_mov_b64 exec, -1' for l in lines)==1
    for k in range(3): assert f'Lpad{k}:' in lines
lp={l[:-1]:n for n,l in enumerate(lines) if l.endswith(':')}
endi=lp['Lend']
for n,l in enumerate(lines):
    if l.startswith(('s_cbranch','s_branch')):
        tg=l.split()[1]
        if lp[tg]<=n:
            if n<endi: assert (l.startswith('s_cbranch_execz') and tg=='Lpadret') or ('probe' in CFG and tg=='Lspin'),l
            elif tg.startswith('Lretry'): assert lines[lp[tg]+2].startswith(f's_sub_u32 s{sSPIN}, s{sSPIN}, 1') and lines[lp[tg]+3]=='s_cbranch_scc1 Lbail',l
            else: assert tg.startswith('Lback') or tg=='Lbail',l
assert sum(('s%d'%sSPIN) in i.wr for i in out if not i.text.startswith('s_sub_u32 s%d'%sSPIN))==1
open(sys.argv[1],'w').write(txt)
from collections import Counter
print(len(out),'instrs',Counter(i.kind for i in out),'nops',sum(i.mn=='s_nop' for i in out),'waits',sum(i.mn=='s_waitcnt' for i in out),file=sys.stderr)
```

```python
import sys,struct,os,json,re
from asmlib import *
NAME='interleave_layers__ssm_conv_s4d__dense_activation_relu__prompt'
STAMP=('stamp' in sys.argv); CLK='s_memtime' if 'cyc' in sys.argv else 's_memrealtime'
CFG=dict(dist=8,hck=6,W=dict(
 N10=('F0',1,11),E0=('K0',2,22),N20=('K0',24,44),E1=('K1',2,22),N30=('K1',23,40),E2=('K2',2,22),E3=('K3',2,20),cs0=('G1_0',2,12),cs1=('K3',21,26),
 G1E0=('G1_1',2,24),G1E1=('G1_2',2,24),G1E2=('G1_3',2,24),G1E3=('G1_4',2,20),rc=('G2_0',24,42),
 G2E0=('G2_1',1,34),G2E1=('G2_2',1,34),G2E2=('G2_3',1,34),G2E3=('G2_4',0,0),
 N01=('F0',0,0),N11=('F0',28,50),N21=('F0',56,92),N31=('F0',97,121),
 nld30=('F0',2,2),nld01=('F0',-40,-34),nld11=('F0',-3,0),nld21=('F0',14,20),nld31=('F0',52,58),
 xld00=('F0',100,112),xld10=('F0',150,162),xld20=('F0',196,208),xld30=('F0',236,248),
 xld01=('F0',92,102),xld11=('F0',150,160),xld21=('F0',196,206),xld31=('F0',232,242),
 S00=('F0',166,186),S01=('F0',132,143),S11=('G1_0',34,43),S21=('G1_1',32,43),S1=('G1_0',26,42),S2=('G1_1',26,42),S3=('G1_2',26,42),
 hld0a=('G1_2',28,46),hld0b=('G1_3',0,22),hld1a=('G1_3',28,40),hld1b=('G2_0',0,10),hld1c=('G2_0',16,26),
 hld2a=('G2_0',28,44),hld2b=('G2_1',3,20),hld3a=('G2_1',30,46),hld3b=('G2_2',5,22),
 pzb=('F0',0,70), w1=('F0',0,130),w2=('K3',4,170),pz=('G1_2',20,27),ca=('G2_3',0,30),ga=('G1_0',24,40)))
if os.path.exists('W.json') and 'now' not in sys.argv: CFG['W'].update({k:tuple(x) for k,x in json.load(open('W.json')).items()})
for a_ in sys.argv[2:]:
    if '=' in a_:
        k_,v_=a_.split('=',1)
        if k_.startswith('W.'): CFG['W'][k_[2:]]=eval(v_)
        else: CFG[k_]=eval(v_)
W1F=0x1200000; W2F=0x180000; ST0=0x2E0000; EP=0x2E4000; WF=0x2E5000; STA=0x2F0000
X1=[0x400000,0x600000]; X2=0x800000; H=0xA00000; X0=0x1000000; TS=0x1600000; WSN=0x1700000
OOB=0x7ff00000
STS=CFG.get('sts',64)
if STS>128: STA=0x1700000; WSN=0x1A00000
assert 512*STS<=0x300000
if CFG.get('alias',0): X1=[X1[0],X0]
XT=0; KC=65536; U=132096; RB=141312; SQ=157696; CSL=SQ+2048; DUM=CSL+768; LDSN=163840
TT=RB; WST=KC
sX,sWS,sOUT,sW,sDBG=8,12,16,20,28
sWV,sRB,sCB,sCP=3,4,5,6
sM1,sM2,sM3=60,62,64
sD=66; s8F=67; sTS=68; sHI=70; sPL=71; sPH=72; sEPS=73; sSPIN=74; sNEG=75
sA=76; sB=84; sC=90; sST=94; sR=96; sCK=98; sCK2=100
sXS,sXL,sHS,sHS2,sHL,sX2S,sSTA,sOB,sX2L,sW1,sW2,sPZ=32,33,24,25,26,27,46,47,7,34,35,36
sTAG=40; sEP=41; sWF=42; sPZ2=69; sPZ=69; sMC=38
sT=sA; sTS2=sTS if 'probe' not in CFG else 37
vGF,vHS,vW,vT16,vL16,vL8,vRR,vRES,vST,vSQ,vR,vSTP=range(12)
tA=12; tB=22
ACC=[24,40]; HBUF=[56,100]
vCA,vCB,vNU,vER,vXS,vXL,vD,vSL=range(56,64)
LAND=68; BASES=[88,64]; ONES=92
TACC=[24,28,32,36,100,104,108,112]
POOL=[92,96,116,120,124,128,132,136,140]; POOL2=[40,44,48,52]
F=[116,120,124,128]; vCS=132
STG=[24,68,100,84]
def W1(ks,t): return a(ks*12+t*4,4)
def W2(ks,t):
    f=ks*4+t
    return a(192+f*4,4) if f<16 else v(144+(f-16)*4,4)
WS=f"s[{sWS}:{sWS+3}]"
fl=lambda x:hex(struct.unpack('<I',struct.pack('<f',x))[0])
stubs=P(); nst=[0]; lab=[0]; PG0=[0]
def newlab(n): lab[0]+=1; return f"L{n}{lab[0]}"
def stamp(l,name):
    if 'probe' in CFG:
        if name=='start': l("s_memrealtime s[40:41]\ns_waitcnt lgkmcnt(0)\ns_mov_b32 s101, s40") if False else None
        if name==CFG['probe']: l(f"s_memrealtime s[{sST}:{sST+1}]",'glue'); l(f"s_mov_b32 s97, s{sST}")
        return
    if not STAMP: return
    if name not in('start','end') and not re.match(CFG.get('st','$^'),name): return
    k=nst[0]; nst[0]+=1; assert k<28
    l(f"{CLK} s[{sST}:{sST+1}]",'glue'); l(f"v_writelane_b32 v{vSTP}, s{sST}, {k} ; stamp {k} {name}")
def bar(l,name='?'):
    n0=len(l); stamp(l,'b'+name+'<'); diag=len(l)>n0
    if diag: l[-1].tag='glue'
    l(".!ldswr",'glue'); l("s_barrier",'glue' if diag else None); stamp(l,'b'+name+'>')
nrt=[28]
def retry(l,loads,check,branch,pre='',name='?'):
    R=newlab('retry'); B=newlab('back')
    n0=len(l); stamp(l,'c'+name+'<'); diag=len(l)>n0
    if diag: l[-1].tag='glue'
    l(check,'glue' if diag else None)
    if pre: l(pre,'glue')
    l(f"{branch} {R}",'glue'); l(f"{B}:",'glue' if diag else None)
    stamp(l,'c'+name+'>')
    stubs(f".!reset\n{R}:\ns_nop 7\ns_sub_u32 s{sSPIN}, s{sSPIN}, 1\ns_cbranch_scc1 Lbail")
    if STAMP:
        k=nrt[0]; nrt[0]+=1; assert k<64
        stubs(f"v_readlane_b32 s{sR}, v{vSTP}, {k}\ns_add_u32 s{sR}, s{sR}, 1\nv_writelane_b32 v{vSTP}, s{sR}, {k}")
    mk='vcc' if 'vcc' in branch else re.search(r's\[\d+:\d+\]',pre).group(0)
    mm=re.match(CFG.get('mret','$^'),name) and not(name[0]=='H' and name[-1]=='0' and CFG.get('htag',1))
    if mm: stubs(f"s_mov_b64 exec, {mk}")
    stubs(loads(sR))
    if mm: stubs("s_mov_b64 exec, -1 ; stub")
    stubs("s_waitcnt vmcnt(0)"); stubs(check)
    if pre: stubs(pre)
    stubs(f"{branch} {R}\ns_nop 4\ns_branch {B}")
def srd(l,d,lo,n):
    l(f"s_mov_b32 s{d}, s{lo}\ns_and_b32 s{d+1}, s{lo+1}, 0xffff\ns_mov_b32 s{d+2}, {hex(n)}\ns_mov_b32 s{d+3}, 0x20000")
def bfround(l,d,sx): l(f"v_cvt_pk_bf16_f32 v{d}, v{sx}, v{sx}\nv_and_b32 v{d}, s{sHI}, v{d}")
def sprinkle(l,extra,every,start=0):
    out=P(); e=list(extra); c=0
    for i in l:
        out.append(i); c+=1
        if e and c>=start and (c-start)%every==0 and i.tag!='glue':
            x=e.pop(0); out.append(x)
            while x.tag=='glue': x=e.pop(0); out.append(x)
    out.extend(e); return out
vTID,vLANE=64,65
vROW=24; vPAR=32; vWL=40; vIDX=100; vPZ=252; vFL=120; vXG=124
def conv_addr(l,st,t0,t1,t2,layer):
    l(f"""s_lshr_b32 s{st}, s{sWV}, 1
    s_and_b32 s{st+1}, s{sWV}, 1
    s_lshl_b32 s{st+1}, s{st+1}, 8
    s_mul_i32 s{st+2}, s{st}, 33280
    s_add_u32 s{st+2}, s{st+2}, s{st+1}
    s_add_u32 s{st+2}, s{st+2}, {KC+48}
    s_mul_i32 s{st}, s{st}, 4608
    s_sub_u32 s{st}, s{st}, s{st+1}
    s_add_u32 s{st}, s{st}, {U+288}
    v_bfe_u32 v{t0}, v{vT16}, 4, 1
    v_lshrrev_b32 v{t1}, 5, v{vT16}
    v_lshlrev_b32 v{vXL}, 9, v{t1}
    v_lshl_add_u32 v{vXL}, v{t0}, 3, v{vXL}
    v_mul_u32_u24 v{vSL}, {STS}, v{t1}
    v_lshl_add_u32 v{vSL}, v{t0}, 5, v{vSL}
    v_mul_u32_u24 v{vNU}, 4608, v{t0}
    v_lshl_add_u32 v{vNU}, v{t1}, 3, v{vNU}
    v_add_u32 v{vNU}, {U+512}, v{vNU}
    v_lshlrev_b32 v{t2}, 4, v{t0}
    v_sub_u32 v{t2}, 16, v{t2}
    v_lshlrev_b32_e64 v{vD}, v{t2}, s{sD}
    v_and_b32 v{vD}, s{sHI}, v{vD}""")
    done(l,f'addrN{layer}')
    l(f"""v_and_b32 v{t1}, 3, v{t1}
    v_lshrrev_b32 v{t2}, 7, v{vT16}
    v_lshlrev_b32 v{vXS}, 14, v{t2}
    v_lshl_add_u32 v{vXS}, v{t0}, 5, v{vXS}
    v_lshl_add_u32 v{vXS}, v{t1}, 3, v{vXS}
    v_lshlrev_b32 v{vER}, 13, v{t0}
    v_lshl_add_u32 v{vER}, v{t1}, 8, v{vER}
    v_lshlrev_b32 v{t1}, 2, v{t1}
    v_and_b32 v{t0}, 15, v{t2}
    v_xor_b32 v{t0}, v{t0}, v{t1}
    v_lshl_add_u32 v{vER}, v{t0}, 4, v{vER}
    v_lshrrev_b32 v{t2}, 4, v{t2}
    v_lshl_add_u32 v{vER}, v{t2}, 10, v{vER}
    v_add_u32 v{vER}, {RB}, v{vER}
    v_bfe_u32 v{t0}, v{vL8}, 3, 3
    v_mul_u32_u24 v{vCA}, 4160, v{t0}
    v_bfe_u32 v{t0}, v{vL8}, 6, 1
    v_lshrrev_b32 v{t1}, 7, v{vL8}
    v_sub_u32 v{t0}, v{t0}, v{t1}
    v_lshlrev_b32 v{t0}, 4, v{t0}
    v_add3_u32 v{vCA}, v{vCA}, v{t0}, s{st+2}
    v_bfe_u32 v{t0}, v{vL8}, 3, 4
    v_lshlrev_b32 v{t0}, 5, v{t0}
    v_lshlrev_b32 v{t1}, 4, v{t1}
    v_add3_u32 v{vCB}, v{t0}, v{t1}, s{st}""")
    done(l,f'addrC{layer}')
def g2_addr(l,st,t0,t1,layer):
    l(f"""s_lshl_b32 s{st}, s{sCB}, 11
    s_lshl_b32 s{st+1}, s{sWV}, 3
    s_add_u32 s{st}, s{st}, s{st+1}
    s_lshl_b32 s{st+1}, s{sWV}, 6
    v_and_b32 v{t0}, 0xf0, v{vL16}
    v_xor_b32 v{t0}, s{st+1}, v{t0}""")
    if layer==0:
        l(f"""v_lshl_add_u32 v{vRES}, v{vL16}, 1, s{st}
        s_lshl_b32 s{st+1}, s{sWV}, 8
        s_add_u32 s{st+1}, s{st+1}, {RB}
        v_lshrrev_b32 v{t1}, 8, v{vL16}
        v_lshlrev_b32 v{t1}, 10, v{t1}
        v_add3_u32 v{vRR}, v{t0}, v{t1}, s{st+1}
        v_lshrrev_b32 v{t0}, 8, v{vL16}
        v_lshlrev_b32 v{t0}, 4, v{t0}
        v_bfe_u32 v{t1}, v{vL16}, 7, 1
        v_lshl_add_u32 v{t0}, v{t1}, 2, v{t0}
        v_bfe_u32 v{t1}, v{vL16}, 4, 1
        v_lshl_add_u32 v{t0}, v{t1}, 3, v{t0}
        v_mov_b32 v{t1}, {OOB}
        s_mov_b32 s{st}, 0x01030103
        s_mov_b32 s{st+1}, s{st}
        v_cndmask_b32 v{vST}, v{t1}, v{t0}, s[{st}:{st+1}]""")
    else:
        l(f"""v_lshrrev_b32 v{t1}, 6, v{vL16}
        v_lshl_add_u32 v{vRR}, v{t1}, 8, v{t0}
        v_add_u32 v{vRR}, {RB}, v{vRR}
        v_lshlrev_b32 v{vST}, 3, v{t1}
        v_bfe_u32 v{t0}, v{vL16}, 4, 2
        v_lshl_add_u32 v{vST}, v{t0}, 10, v{vST}
        v_and_b32 v{t1}, 3, v{t1}
        v_lshl_add_u32 v{t0}, v{t0}, 2, v{t1}
        v_lshrrev_b32 v{t1}, 8, v{vL16}
        v_lshl_add_u32 v{t0}, v{t1}, 4, v{t0}
        v_lshl_add_u32 v{vRES}, v{t0}, 5, s{st}""")
    done(l,f'addrG{layer}')
def nomarks(l): return P([i for i in l if i.kind!='mark'])
def phaseP():
    MP=CFG.get('map',0)
    p=P()
    p(f"""s_cmp_ge_u32 s2, 256
    s_cbranch_scc1 Lend
    {'s_memrealtime s[98:99]' if 'probe' in CFG else ''}
    s_load_dwordx16 s[32:47], s[0:1], 0
    s_load_dwordx8 s[48:55], s[0:1], 64
    s_load_dwordx2 s[56:57], s[0:1], 96
    s_getpc_b64 s[58:59]
    v_mov_b32 v{vTID}, v0
    v_lshrrev_b32 v12, 6, v0
    v_and_b32 v{vLANE}, 63, v0
    v_readfirstlane_b32 s{sWV}, v12
    s_lshr_b32 s{sT}, s2, 3
    s_mul_i32 s{sT}, s{sT}, 10
    v_min_u32 v16, 9, v{vLANE}
    v_add_lshl_u32 v16, v16, s{sT}, 7
    v_min_u32 v16, CODESZ, v16
    s_cmp_lg_u32 s{sWV}, 3
    s_cbranch_scc1 Lnopf
    global_load_dword v66, v16, s[58:59] ; skip
    Lnopf:
    v_lshlrev_b32 v{vT16}, 4, v0
    v_lshlrev_b32 v{vL16}, 4, v{vLANE}
    v_lshlrev_b32 v{vL8}, 3, v{vLANE}
    s_and_b32 s{sT}, s2, 7
    s_lshr_b32 s{sT+1}, s2, 3
    s_lshl_b32 s{sCP}, s{sT}, 5
    s_add_u32 s{sCP}, s{sCP}, s{sT+1}
    s_lshr_b32 s{sRB}, s{sT}, {MP}
    s_lshl_b32 s{sRB}, s{sRB}, {2+MP}
    s_lshr_b32 s{sT+2}, s{sT+1}, {3-MP}
    s_add_u32 s{sRB}, s{sRB}, s{sT+2}
    s_and_b32 s{sCB}, s{sT}, {(1<<MP)-1}
    s_lshl_b32 s{sCB}, s{sCB}, {3-MP}
    s_and_b32 s{sT+2}, s{sT+1}, {(8>>MP)-1}
    s_add_u32 s{sCB}, s{sCB}, s{sT+2}
    s_mov_b32 s{sHI}, 0xffff0000
    s_mov_b32 s{sSPIN}, 100000
    s_nop 0""")
    LA=newlab('w2'); LB=newlab('wj'); LC=newlab('w3')
    w=sB
    p(f"""s_and_b32 s{sT}, s{sWV}, 1
    s_lshl_b32 s{sT+1}, s{sRB}, 1
    s_add_u32 s{sT}, s{sT}, s{sT+1}
    s_lshl_b32 s{w+8}, s{sCB}, 7
    s_lshr_b32 s{w+9}, s{sWV}, 1
    s_lshl_b32 s{w+9}, s{w+9}, 6
    s_add_u32 s{w+8}, s{w+8}, s{w+9}
    s_add_u32 s{w+8}, s{w+8}, s{sT}
    s_lshl_b32 s{w+8}, s{w+8}, 2
    s_add_u32 s{w+8}, s{w+8}, {WF}
    s_mul_i32 s{w+1}, s{sWV}, 5120
    s_add_u32 s{w+1}, s{w+1}, {WST}
    s_mov_b64 s[{sCK2}:{sCK2+1}], 0
    s_cmp_ge_u32 s{sWV}, 2
    s_cselect_b32 s{w+9}, 0x80008000, 0
    s_cbranch_scc1 {LA}
    s_lshr_b32 s{sT+1}, s{sT}, 4
    s_lshl_b32 s{sT+2}, s{sT+1}, 2
    s_xor_b32 s{sT+2}, s{sT+2}, s{sT}
    s_and_b32 s{sT+2}, s{sT+2}, 15
    s_mul_i32 s{sT+2}, s{sT+2}, {32*2752}
    s_mul_i32 s{sT+3}, s{sCB}, 344
    s_add_u32 s{sT+2}, s{sT+2}, s{sT+3}
    s_mul_i32 s{sT+3}, s{sT+1}, 88
    s_add_u32 s{sT+2}, s{sT+2}, s{sT+3}
    s_lshl_b32 s{w}, s{sCB}, 6
    s_add_u32 s{w}, s{w}, s{sT}
    s_mul_i32 s{w}, s{w}, 3072
    s_add_u32 s{w}, s{w}, {W1F}
    s_mov_b32 s{w+7}, {OOB}
    s_mov_b32 s{w+6}, 0
    s_mov_b32 s{w+2}, 0xf000f000
    s_mov_b32 s{w+3}, 0xf000f000
    s_cmp_eq_u32 s{sT+1}, 3
    s_cselect_b32 s{w+4}, 0x0f000f00, 0
    s_mov_b32 s{w+5}, s{w+4}""")
    for i in range(3):
        p(f"""v_add_u32 v20, {64*i}, v{vLANE}
        v_mul_u32_u24 v21, 171, v20
        v_lshrrev_b32 v21, 10, v21
        v_lshlrev_b32 v20, 4, v20
        v_mul_u32_u24 v22, {2752-96}, v21
        v_add3_u32 v{132+i}, v22, v20, s{sT+2}
        v_lshlrev_b32 v22, 6, v21
        v_add3_u32 v{140+i}, v22, v20, s{w+1}""")
    p(f"""v_mov_b32 v135, {OOB}
    v_mov_b32 v143, {DUM}
    s_branch {LB}
    {LA}:
    s_mul_i32 s{sT+1}, s{sT}, 187
    s_lshr_b32 s{sT+1}, s{sT+1}, 11
    s_mul_i32 s{sT+2}, s{sT+1}, 11
    s_sub_u32 s{sT+2}, s{sT}, s{sT+2}
    s_mul_i32 s{w}, s{sCB}, 44
    s_add_u32 s{w}, s{w}, s{sT}
    s_lshl_b32 s{w}, s{w}, 12
    s_add_u32 s{w}, s{w}, {W2F}
    s_cmp_ge_u32 s{sT}, 44
    s_cselect_b32 s{w+7}, {OOB}, 0
    s_mov_b32 s{w+6}, s{w+7}
    s_mov_b64 s[{w+2}:{w+3}], 0
    s_mov_b64 s[{w+4}:{w+5}], 0
    s_mul_i32 s{sT+1}, s{sT+1}, {344*1024}
    s_lshl_b32 s{sT+3}, s{sCB}, 7
    s_add_u32 s{sT+1}, s{sT+1}, s{sT+3}
    v_lshrrev_b32 v20, 3, v{vLANE}
    v_and_b32 v21, 0x70, v{vL16}
    v_mul_u32_u24 v22, 160, v20
    v_add3_u32 v140, v22, v21, s{w+1}
    v_add_u32 v141, 1280, v140
    v_add_u32 v142, 2560, v140
    v_add_u32 v143, 3840, v140
    s_cmp_ge_u32 s{sT+2}, 8
    s_cselect_b32 s{sCK2}, 0, s{w+9}
    s_cselect_b32 s{sCK2+1}, s{w+9}, 0
    s_cbranch_scc1 {LC}
    s_lshr_b32 s{sT+3}, s{sT+2}, 2
    s_mul_i32 s{sT+3}, s{sT+3}, {172*1024}
    s_and_b32 s{sT+2}, s{sT+2}, 3
    s_mul_i32 s{sT+2}, s{sT+2}, {44*1024}
    s_add_u32 s{sT+1}, s{sT+1}, s{sT+3}
    s_add_u32 s{sT+1}, s{sT+1}, s{sT+2}
    v_lshlrev_b32 v22, 10, v20
    v_add3_u32 v132, v22, v21, s{sT+1}
    v_add_u32 v133, 0x2000, v132
    v_add_u32 v134, 0x4000, v132
    v_add_u32 v135, 0x6000, v132
    s_branch {LB}
    {LC}:
    s_sub_u32 s{sT+2}, s{sT+2}, 8
    s_lshl_b32 s{sT+2}, s{sT+2}, 3
    v_and_b32 v22, 3, v20
    v_lshlrev_b32 v22, 10, v22
    v_add3_u32 v21, v21, v22, s{sT+1}
    v_lshrrev_b32 v20, 2, v20
    v_add_u32 v20, s{sT+2}, v20
    v_mov_b32 v57, 0x100000""")
    for i in range(4):
        p(f"""v_add_u32 v22, {2*i}, v20
        v_mul_u32_u24 v23, 43, v22
        v_lshrrev_b32 v23, 7, v23
        v_lshrrev_b32 v56, 2, v23
        v_lshl_add_u32 v23, v23, 3, v22
        v_sub_u32 v23, v23, v56
        v_lshl_add_u32 v23, v23, 2, 32
        v_mul_u32_u24 v56, 12, v56
        v_sub_u32 v22, v22, v56
        v_cmp_eq_u32 vcc, 11, v22
        v_cndmask_b32 v23, v23, v57, vcc
        v_lshl_add_u32 v{132+i}, v23, 10, v21""")
    p(f"{LB}:")
    p(f"""s_nop 0
    v_mov_b32 v{vPZ}, -1
    v_mov_b32 v{vPZ+1}, -1
    v_mov_b32 v{vPZ+2}, -1
    v_mov_b32 v{vPZ+3}, -1
    v_mov_b32 v{vSTP}, 0
    s_lshl_b32 s{sPZ2}, s2, 13
    s_lshl_b32 s{sT+1}, s{sWV}, 11
    s_add_u32 s{sT}, s{sPZ2}, s{sT+1}
    s_lshr_b32 s{sT+1}, s{sWV}, 1
    s_lshl_b32 s{sT+1}, s{sT+1}, 12
    s_and_b32 s{sT+2}, s{sWV}, 1
    s_lshl_b32 s{sT+2}, s{sT+2}, 9
    s_add_u32 s{sT+1}, s{sT+1}, s{sT+2}
    s_add_u32 s{sT+1}, s{sT+1}, s{sPZ2}
    v_lshlrev_b32 v13, 2, v{vLANE}
    s_mov_b32 s{sT+5}, {EP}""")
    stamp(p,'start')
    srd(p,sWS,56,WSN)
    if 'probe' in CFG: p("s_mov_b32 s68, s98")
    p(f"buffer_load_dword v{vPAR+6}, off, {WS}, s{sT+5} sc1")
    srd(p,sX,32,0x200000)
    p(f"""buffer_load_dwordx4 {v(vROW,4)}, v{vL16}, s[{sX}:{sX+3}], s{sT} offen
    buffer_load_dwordx4 {v(vROW+4,4)}, v{vL16}, s[{sX}:{sX+3}], s{sT} offen offset:1024""")
    for c in range(2):
        for r in range(4): p(f"buffer_load_dword v{vXG+4*c+r}, v13, s[{sX}:{sX+3}], s{sT+1} offen offset:{r*1024+c*256}")
    p(f"""s_lshl_b32 s{sT}, s{sCP}, 9
    v_lshl_add_u32 v12, v{vTID}, 1, s{sT}
    global_load_ushort v{vPAR}, v12, s[34:35]
    global_load_ushort v{vPAR+1}, v12, s[36:37]
    global_load_ushort v{vPAR+2}, v12, s[38:39]
    global_load_ushort v{vPAR+3}, v12, s[40:41]
    v_lshrrev_b32 v12, 7, v12
    v_and_b32 v12, -2, v12
    global_load_ushort v{vPAR+4}, v12, s[42:43]
    s_lshl_b32 s{sT}, s{sCP}, 2
    v_mov_b32 v12, s{sT}
    global_load_dword v{vPAR+5}, v12, s[44:45]""")
    stamp(p,'p loads1')
    srd(p,sOUT,52,0x200000)
    p(f"""s_cmp_ge_u32 s{sWV}, 2
    s_cselect_b32 s{sW}, s50, s48
    s_cselect_b32 s{sW+1}, s51, s49
    s_and_b32 s{sW+1}, s{sW+1}, 0xffff
    s_mov_b32 s{sW+2}, {512*1376*2}
    s_mov_b32 s{sW+3}, 0x20000""")
    if CFG.get('wpf',0):
        p(f"""s_and_b32 s{sT}, s{sWV}, 1
        s_lshl_b32 s{sT+1}, s2, 1
        s_add_u32 s{sT}, s{sT}, s{sT+1}
        s_mul_i32 s{sT}, s{sT}, 2752
        v_min_u32 v12, 42, v{vLANE}
        v_lshlrev_b32 v12, 6, v12
        buffer_load_dword v67, v12, s[{sW}:{sW+3}], s{sT} offen""")
    def wloads():
        for i in range(4): p(f"buffer_load_dwordx4 {v(vWL+4*i,4)}, v{132+i}, s[{sW}:{sW+3}], 0 offen")
    stamp(p,'p loads2')
    def poison(l,base,n,mul):
        l(f"s_mul_i32 s{sT+3}, s2, {mul}",'glue'); l(f"s_add_u32 s{sT+3}, s{sT+3}, {base}",'glue')
        for i in range(n):
            if i: l(f"s_add_u32 s{sT+3}, s{sT+3}, 4096",'glue')
            l(f"buffer_store_dwordx4 {v(vPZ,4)}, v{vT16}, {WS}, s{sT+3} offen sc1",'pz')
    def poisonB(l):
        if not CFG.get('htag',1): poison(l,H,6,24576)
        poison(l,X2,2,8192)
        l(f"""v_mov_b32 v248, 0
        v_lshlrev_b32 v249, 2, v{vTID}
        v_mov_b32 v250, {OOB}
        v_cmp_gt_u32 vcc, 32, v{vTID}
        v_cndmask_b32 v249, v250, v249, vcc
        s_lshl_b32 s{sT+3}, s2, 7
        s_add_u32 s{sT+3}, s{sT+3}, {STA}""",'glue')
        l(f"buffer_store_dword v248, v249, {WS}, s{sT+3} offen sc1",'pz')
    poison(p,X1[0],2,8192)
    stamp(p,'p poison')
    def pads(l):
        l(f"""s_mov_b64 exec, 0
        s_cmp_eq_u32 s{sWV}, 0
        s_cbranch_scc1 Lpad0
        s_cmp_eq_u32 s{sWV}, 1
        s_cbranch_scc1 Lpad1
        s_cmp_eq_u32 s{sWV}, 2
        s_cbranch_scc1 Lpad2
        s_branch Lpad3
        Lpadret:
        s_mov_b64 exec, -1""")
    p(f"""s_mov_b32 s{sPL}, 0x05040100
    s_mov_b32 s{sPH}, 0x07060302
    s_mov_b32 s{sEPS}, 0x3727c5ac
    s_mov_b32 s{sNEG}, 0x80008000
    s_mov_b32 s{s8F}, 0x41000000
    s_mov_b32 s{sM1}, 0x22222222
    s_mov_b32 s{sM1+1}, 0x22222222
    s_mov_b32 s{sM2}, 0x44444444
    s_mov_b32 s{sM2+1}, 0x44444444
    s_mov_b32 s{sM3}, 0x88888888
    s_mov_b32 s{sM3+1}, 0x88888888
    s_mov_b32 s{sMC}, 0x00020002
    s_mov_b32 s{sMC+1}, 0x00020002
    s_lshr_b32 s45, s2, 3
    s_lshl_b32 s45, s45, 2
    s_add_u32 s45, s45, s{sWV}
    s_lshl_b32 s45, s45, 9
    s_min_u32 s45, s45, CODESZ-448
    s_lshl_b32 s{sTS2}, s2, 2
    s_add_u32 s{sTS2}, s{sTS2}, s{sWV}
    s_lshl_b32 s{sTS2}, s{sTS2}, 8
    s_add_u32 s{sTS2}, s{sTS2}, {TS}
    s_lshl_b32 s{sXS}, s{sCP}, 6
    s_lshl_b32 s{sXL}, s{sRB}, 14
    s_and_b32 s{sX2L}, s{sCP}, 31
    s_lshl_b32 s{sX2L}, s{sX2L}, 4
    s_lshr_b32 s{sT}, s{sCP}, 5
    s_lshl_b32 s{sT}, s{sT}, 18
    s_add_u32 s{sX2L}, s{sX2L}, s{sT}
    s_lshl_b32 s{sT}, s{sRB}, 4
    s_add_u32 s{sHL}, s{sT}, s{sWV}
    s_mul_i32 s{sHL}, s{sHL}, 11264
    s_add_u32 s{sHL}, s{sHL}, {H}
    s_lshr_b32 s{sT+1}, s{sCB}, 1
    s_add_u32 s{sT}, s{sT}, s{sT+1}
    s_mul_i32 s{sT}, s{sT}, 11264
    s_add_u32 s{sT}, s{sT}, {H}
    s_and_b32 s{sT+1}, s{sCB}, 1
    s_lshl_b32 s{sT+1}, s{sT+1}, 2
    s_add_u32 s{sT+1}, s{sT+1}, s{sWV}
    s_lshl_b32 s{sHS}, s{sT+1}, 10
    s_add_u32 s{sHS}, s{sHS}, s{sT}
    s_mul_i32 s{sHS2}, s{sT+1}, 384
    s_add_u32 s{sHS2}, s{sHS2}, s{sT}
    s_add_u32 s{sHS2}, s{sHS2}, 8192
    s_lshl_b32 s{sT}, s{sRB}, 2
    s_add_u32 s{sT}, s{sT}, s{sWV}
    s_mul_i32 s{sSTA}, s{sT}, {STS}
    s_add_u32 s{sSTA}, s{sSTA}, {STA}
    s_lshl_b32 s{sX2S}, s{sT}, 9
    s_lshl_b32 s{sT}, s{sT}, 12
    s_lshl_b32 s{sT+1}, s{sCB}, 7
    s_add_u32 s{sOB}, s{sT}, s{sT+1}
    s_lshl_b32 s{sT+1}, s{sCB}, 18
    s_add_u32 s{sX2S}, s{sX2S}, s{sT+1}
    s_add_u32 s{sX2S}, s{sX2S}, {X2}
    s_lshl_b32 s{sT}, s{sCB}, 2
    s_add_u32 s{sT}, s{sT}, s{sWV}
    s_mul_i32 s{sW1}, s{sT}, {48*1024}
    s_add_u32 s{sW1}, s{sW1}, {W1F}
    s_mul_i32 s{sW2}, s{sT}, {44*1024}
    s_add_u32 s{sW2}, s{sW2}, {W2F}
    s_lshl_b32 s{sT}, s{sWV}, 12
    v_add_u32 v{vGF}, s{sT}, v{vL8}
    s_add_u32 s{sT}, s{sT}, {RB}
    v_lshrrev_b32 v12, 4, v{vLANE}
    v_lshlrev_b32 v13, 6, v12
    v_xor_b32 v13, v{vL16}, v13
    v_add_u32 v{vW}, s{sT}, v13
    v_mov_b32 v13, {OOB}
    v_cmp_gt_u32 vcc, 48, v{vLANE}
    v_cndmask_b32 v{vHS}, v13, v{vL8}, vcc
    v_bfe_u32 v13, v{vLANE}, 2, 2
    v_cmp_eq_u32 vcc, v13, v12
    s_lshl_b32 s{sT}, s{sWV}, 2
    s_add_u32 s{sT}, s{sT}, {SQ}
    v_and_b32 v13, 0xf0, v{vL16}
    v_add_u32 v13, s{sT}, v13
    v_mov_b32 v12, {DUM}
    v_cndmask_b32 v{vSQ}, v12, v13, vcc""")
    l=P(); g2_addr(l,sT,12,13,0); p.extend(nomarks(l))
    p(f"v_lshlrev_b32 v12, 3, v{vTID}\nv_mov_b32 v15, 1023\ns_mov_b32 s{sT}, {TT}")
    for i in range(15):
        d=vIDX+i
        p(f"""v_add_u32 v13, {7-i}, v12
        v_cvt_f32_i32 v14, v13
        v_cvt_pk_bf16_f32 v14, v14, 0
        v_subrev_u32 v14, {0x4300-128}, v14
        v_min_i32 v{d}, 0x80, v13
        v_max_i32 v{d}, v{d}, v14""")
        if i>7: p(f"v_cmp_gt_i32 vcc, 0, v13\nv_cndmask_b32 v{d}, v{d}, v15, vcc")
        p(f"v_lshl_add_u32 v{d}, v{d}, 2, s{sT}")
    p(f"""v_mov_b32 v14, 0
    v_and_b32 v12, 127, v{vTID}
    v_lshrrev_b32 v13, 7, v{vTID}
    v_mul_u32_u24 v13, 4608, v13
    v_lshl_add_u32 v12, v12, 2, v13
    v_add_u32 v12, {U}, v12
    ds_write_b32 v12, v14""")
    ldfl=lambda sr:f"buffer_load_dwordx4 {v(vFL,4)}, off, s[{sDBG}:{sDBG+3}], 0 sc1 ; skip"
    if CFG.get('wl',1)==1: wloads()
    if CFG.get('pad',3)==1: pads(p)
    stamp(p,'p pre done')
    t=72
    for r in range(2):
        for k in range(4):
            p(f"v_lshlrev_b32 v{t+2*k}, 16, v{vROW+4*r+k}\nv_and_b32 v{t+2*k+1}, s{sHI}, v{vROW+4*r+k}")
        S,Q=t+8+r,t+10+r
        p(f"v_add_f32 v{S}, v{t}, v{t+1}\nv_mul_f32 v{Q}, v{t}, v{t}\nv_fmac_f32 v{Q}, v{t+1}, v{t+1}")
        for k in range(2,8): p(f"v_add_f32 v{S}, v{S}, v{t+k}\nv_fmac_f32 v{Q}, v{t+k}, v{t+k}")
    S,Q=t+8,t+10
    p(f"""v_permlane32_swap_b32 v{S}, v{S+1}
    v_permlane32_swap_b32 v{Q}, v{Q+1}
    v_add_f32 v{S}, v{S}, v{S+1}
    v_add_f32 v{Q}, v{Q}, v{Q+1}
    v_lshrrev_b32 v{t+2}, 2, v{vLANE}
    v_permlane16_swap_b32 v{S}, v{Q}
    v_add_f32 v{S}, v{S}, v{Q}
    v_mov_b32 v{t+3}, {OOB}
    v_and_b32 v{t+4}, 31, v{vLANE}
    v_add_f32_dpp v{S}, v{S}, v{S} row_ror:8 row_mask:0xf bank_mask:0xf
    v_cmp_eq_u32 vcc, 0, v{t+4}
    s_lshl_b32 s{sT}, s2, 6
    v_add_f32_dpp v{S}, v{S}, v{S} row_half_mirror row_mask:0xf bank_mask:0xf
    v_cndmask_b32 v{t+2}, v{t+3}, v{t+2}, vcc
    s_lshl_b32 s{sT+1}, s{sWV}, 4
    v_add_f32_dpp v{S}, v{S}, v{S} quad_perm:[2,3,0,1] row_mask:0xf bank_mask:0xf
    s_add_u32 s{sT}, s{sT}, s{sT+1}
    s_add_u32 s{sT}, s{sT}, {ST0}
    v_add_f32_dpp v{S}, v{S}, v{S} quad_perm:[1,0,3,2] row_mask:0xf bank_mask:0xf
    v_mul_f32 v{t}, 0x3b000000, v{S}
    v_mul_f32 v{Q}, 0x3b000000, v{S}
    v_permlane16_swap_b32 v{t}, v{Q}
    v_fma_f32 v{Q}, -v{t}, v{t}, v{Q}
    v_max_f32 v{Q}, 0, v{Q}""")
    bfround(p,Q,Q); p(f"v_add_f32 v{Q}, s{sEPS}, v{Q}"); bfround(p,Q,Q); p(f"v_sqrt_f32 v{Q}, v{Q}")
    p(f"""v_cvt_pk_bf16_f32 v{vFL}, v{t}, v{Q}
    v_mov_b32 v{vFL+2}, v{t+2}
    s_mov_b32 s{sT+6}, s{sT}
    v_readfirstlane_b32 s{sEP}, v{vPAR+6}
    s_mul_i32 s{sTAG}, s{sEP}, 0x9e3779b1
    s_add_u32 s{sTAG}, s{sTAG}, 0x7f4a7c15
    v_mov_b32 v{vFL+1}, s{sTAG}""")
    p(f"""s_lshr_b32 s{sT}, s{sWV}, 1
    s_lshl_b32 s{sT+1}, s2, 1
    s_add_u32 s{sT}, s{sT}, s{sT+1}
    s_lshl_b32 s{sT}, s{sT}, 9
    s_and_b32 s{sT+1}, s{sWV}, 1
    s_lshl_b32 s{sT+1}, s{sT+1}, 20
    s_add_u32 s{sT}, s{sT}, s{sT+1}
    s_add_u32 s{sT}, s{sT}, {X0}
    s_add_u32 s{sT+1}, s{sT}, 0x80000
    v_lshrrev_b32 v12, 5, v{vLANE}
    v_and_b32 v13, 0x1f0, v{vL16}
    v_lshl_add_u32 v12, v12, 18, v13""")
    for c in range(2):
        g=vXG+4*c; d=76+4*c
        p(f"""v_perm_b32 v{d}, v{g+1}, v{g}, s{sPL}
        v_perm_b32 v{d+1}, v{g+3}, v{g+2}, s{sPL}
        v_perm_b32 v{d+2}, v{g+1}, v{g}, s{sPH}
        v_perm_b32 v{d+3}, v{g+3}, v{g+2}, s{sPH}""")
        p(f"buffer_store_dwordx4 {v(d,4)}, v12, {WS}, s{sT+c} offen sc1",'wst')
    stamp(p,'p stats stored')
    if CFG.get('wl',1)==2: wloads()
    k=P()
    k(f"v_readfirstlane_b32 s{sD}, v{vPAR+5}")
    lA,Ai,Cr,Ci,ld=[vPAR+i for i in range(5)]
    for r in (lA,Ai,Cr,Ci,ld): k(f"v_lshlrev_b32 v{r}, 16, v{r}")
    k(f"v_mul_f32 v{lA}, 0x3fb8aa3b, v{lA}\nv_mul_f32 v{ld}, 0x3fb8aa3b, v{ld}\nv_exp_f32 v{lA}, v{lA}\nv_exp_f32 v{ld}, v{ld}")
    bfround(k,lA,lA); bfround(k,ld,ld)
    k(f"""v_mul_f32 v{lA}, v{lA}, v{ld}
    v_mul_f32 v{Ai}, v{Ai}, v{ld}
    v_add_f32 v{ld}, v{ld}, v{ld}
    v_mul_f32 v{lA}, 0xbfb8aa3b, v{lA}
    v_mul_f32 v{Ai}, 0.15915494, v{Ai}
    v_mul_f32 v{Cr}, v{Cr}, v{ld}
    v_mul_f32 v{Ci}, v{Ci}, v{ld}""")
    p.extend(k); stamp(p,'p params')
    def weights(p):
        for i in range(4): p(f"ds_write_b128 v{140+i}, {v(vWL+4*i,4)}")
        p(f"""v_lshrrev_b32 v136, 2, v{vLANE}
        v_mul_u32_u24 v136, 160, v136
        v_and_b32 v137, 24, v{vL8}
        v_add3_u32 v136, v136, v137, s{w+1}
        v_mov_b32 v137, 0x3f803f80
        v_or_b32 v138, s{w+6}, v{vL16}
        v_or_b32 v139, s{w+7}, v{vL16}""")
        for tt in range(4):
            for h in range(2): p(f"ds_read_b64_tr_b16 {v(vWL+4*tt+2*h,2)}, v136 offset:{tt*32+h*2560}")
        for kk in range(4):
            p(f"v_cndmask_b32 v{vWL+8+kk}, v{vWL+8+kk}, v137, s[{w+2}:{w+3}]\nv_cndmask_b32 v{vWL+8+kk}, v{vWL+8+kk}, 0, s[{w+4}:{w+5}]")
        for tt in range(4):
            if CFG.get('htag',1):
                for d,sm in ((1,w+9),(2,sCK2),(3,sCK2+1)): p(f"v_xor_b32 v{vWL+4*tt+d}, s{sm}, v{vWL+4*tt+d}")
            p(f"buffer_store_dwordx4 {v(vWL+4*tt,4)}, v{139 if tt==3 else 138}, {WS}, s{w} offen offset:{tt*1024} sc1",'wst2')
        stamp(p,'p weights stored')
    k=P(); Z={}
    for kk,pw in enumerate([1,8,64,128,192,256]):
        d=68+2*kk; Z[pw]=d; e0,e1=12+2*(kk%2),13+2*(kk%2)
        k(f"""v_mul_f32 v{e1}, {fl(pw)}, v{Ai}
        v_mul_f32 v{e0}, {fl(pw)}, v{lA}
        v_fract_f32 v{e1}, v{e1}
        v_exp_f32 v{e0}, v{e0}
        v_cos_f32 v{d}, v{e1}
        v_sin_f32 v{d+1}, v{e1}
        v_mul_f32 v{d}, v{d}, v{e0}
        v_mul_f32 v{d+1}, v{d+1}, v{e0}""")
    k(f"""v_lshrrev_b32 v12, 7, v{vTID}
    v_lshlrev_b32 v12, 15, v12
    v_and_b32 v13, 127, v{vTID}
    v_lshl_add_u32 v12, v13, 5, v12
    v_mov_b32 v14, 1.0
    v_mov_b32 v15, 0""")
    def cmul(d,x,y):
        k(f"""v_pk_mul_f32 {v(d,2)}, {v(x,2)}, {v(y,2)} op_sel_hi:[1,0]
        v_pk_fma_f32 {v(d,2)}, {v(x,2)}, {v(y,2)}, {v(d,2)} op_sel:[1,1,0] op_sel_hi:[0,1,1] neg_lo:[0,1,0]""")
    PK=[80,88]; tv=[16,18,20,22]
    def pack(pk,i,x,y,neg):
        n='-' if neg else ''
        k(f"v_cvt_pk_bf16_f32 v{pk+i}, v{x}, v{y}\nv_cvt_pk_bf16_f32 v{pk+4+i}, {n}v{x+1}, {n}v{y+1}")
    def flush(pk,tile,half): k(f"ds_write_b128 v12, {v(pk,4)} offset:{tile*8192+half*16}\nds_write_b128 v12, {v(pk+4,4)} offset:{tile*8192+4096+half*16}")
    def chain(pk,x0,z,neg,second=None):
        cur=x0
        for i in range(4):
            if i: cmul(tv[0],cur,z); cur=tv[0]
            if i==0 and second is not None: nx=second
            else: cmul(tv[1],cur,z); nx=tv[1]
            pack(pk,i,cur,nx,neg); cur=nx
    for c,x0 in enumerate([14,Z[64],Z[128],Z[192]]):
        chain(PK[c%2],x0,Z[8],0,Z[8] if c==0 else None); flush(PK[c%2],2+(c>>1),c&1)
    chain(PK[0],Cr,Z[1],1); flush(PK[0],0,0)
    z2,z4=24,26; y=[28,30]
    cmul(z2,Z[1],Z[1]); cmul(y[0],Cr,Z[256]); cmul(z4,z2,z2)
    cmul(tv[0],y[0],z2); pack(PK[1],0,y[0],tv[0],1); cmul(tv[1],tv[0],z2); cmul(tv[0],tv[1],z2); pack(PK[1],1,tv[1],tv[0],1)
    cmul(y[1],y[0],Z[256]); cmul(tv[0],y[1],z4); pack(PK[1],2,y[1],tv[0],1)
    cmul(y[0],y[1],Z[256]); cmul(tv[0],y[0],z4); pack(PK[1],3,y[0],tv[0],1); flush(PK[1],0,1)
    cmul(y[1],y[0],Z[256]); cmul(y[0],y[1],Z[256]); pack(PK[0],0,y[1],y[0],1)
    cmul(y[1],y[0],Z[256]); cmul(y[0],y[1],Z[256]); pack(PK[0],1,y[1],y[0],1)
    cmul(y[1],y[0],Z[256]); pack(PK[0],2,y[1],y[1],1); flush(PK[0],1,0)
    ar=P()
    ar(f".!vmtag wst\nbuffer_store_dwordx2 {v(vFL,2)}, v{vFL+2}, {WS}, s{sT+6} offen sc1")
    stamp(ar,'p arrived')
    ORD=CFG.get('ord',2)
    if CFG.get('pzb','c')=='k':
        assert STS==64
        pb0=P(); poisonB(pb0); k=sprinkle(k,pb0,CFG.get('pze',16),CFG.get('pzs',10))
    if ORD==0:
        cut=CFG.get('arr',170); wc=CFG.get('wcut',230)
        p.extend(k[:cut]); p.extend(ar); p.extend(k[cut:wc]); weights(p); p.extend(k[wc:])
    elif ORD==2: p.extend(k); p.extend(ar)
    elif ORD==3: p.extend(k); p.extend(ar); weights(p)
    else: p.extend(k)
    bar(p)
    stamp(p,'p tables done')
    p(f"""s_nop 0
    s_lshr_b32 s{sT}, s{sWV}, 1
    s_lshl_b32 s{sT}, s{sT}, 15
    s_and_b32 s{sT+1}, s{sWV}, 1
    s_lshl_b32 s{sT+2}, s{sT+1}, 13
    v_add_u32 v12, s{sT}, v{vL8}
    v_add_u32 v13, s{sT+2}, v12""")
    m=P(); fr=[16,28,144,68]
    def kld(ks):
        b=fr[ks%4]
        for tt,(ad,of) in enumerate([(12,0),(12,8192),(13,16384)]):
            for h in range(2): m(f"ds_read_b64_tr_b16 {v(b+4*tt+2*h,2)}, v{ad} offset:{of+ks*1024+h*512}")
    kld(0); kld(1)
    for ks in range(8):
        if ks+2<8: kld(ks+2)
        b=fr[ks%4]
        for tt in range(2): m(f"v_mfma_f32_16x16x32_bf16 {v(80+4*tt,4)}, {v(b+4*tt,4)}, {v(b+8,4)}, {'0' if ks==0 else v(80+4*tt,4)}")
    p.extend(m)
    p(f"""s_lshl_b32 s{sT+1}, s{sT+1}, 4
    s_and_b32 s{sT}, s{sWV}, 2
    s_add_u32 s{sT}, s{sT}, {TT}
    v_and_b32 v13, 15, v{vLANE}
    v_lshrrev_b32 v14, 4, v{vLANE}
    v_add_u32 v13, s{sT+1}, v13
    v_max_u32 v15, 1, v14
    v_sub_u32 v15, 4, v15
    v_lshlrev_b32 v15, v15, v13
    v_lshlrev_b32 v16, 2, v14
    v_lshlrev_b32 v17, 7, v14
    v_cmp_gt_u32 vcc, 2, v14
    v_cndmask_b32 v16, v17, v16, vcc
    v_add_u32 v15, v15, v16
    v_lshl_add_u32 v15, v15, 2, s{sT}
    v_cmp_eq_u32 vcc, 3, v14
    v_mov_b32 v16, 8
    v_mov_b32 v18, 0x100
    v_cndmask_b32 v16, v16, v18, vcc
    v_add_u32 v16, v16, v15
    v_add_u32 v17, v17, v13
    v_lshl_add_u32 v17, v17, 2, s{sT}
    v_cmp_eq_u32 vcc, 63, v{vLANE}
    v_cvt_pk_bf16_f32 v80, v80, v81
    v_cvt_pk_bf16_f32 v82, v82, v83
    v_cvt_pk_bf16_f32 v84, v84, v85
    v_cvt_pk_bf16_f32 v86, v86, v87
    v_cndmask_b32 v86, v86, 0, vcc
    ds_write_b16 v15, v80
    ds_write_b16_d16_hi v15, v80 offset:4
    ds_write_b16 v16, v82
    ds_write_b16_d16_hi v16, v82 offset:4
    ds_write_b16 v17, v84 offset:2048
    ds_write_b16_d16_hi v17, v84 offset:{2048+128}
    ds_write_b16 v17, v86 offset:{2048+256}
    ds_write_b16_d16_hi v17, v86 offset:{2048+384}
    v_mov_b32 v12, 0""")
    l=P(); conv_addr(l,sT,18,19,20,0); p.extend(nomarks(l))
    def wflag(l): l(f"""v_mov_b32 v{vFL+2}, s{sTAG}
    v_lshlrev_b32 v{vFL+3}, 25, v{vLANE}
    v_min_u32 v{vFL+3}, {OOB}, v{vFL+3}
    v_or_b32 v{vFL+3}, s{w+6}, v{vFL+3}
    .!vmtag wst2
    buffer_store_dword v{vFL+2}, v{vFL+3}, {WS}, s{w+8} offen sc1""")
    SL=124
    ldst=lambda sr:'\n'.join(f"s_mov_b32 s{sr}, {ST0+q*4096}\nbuffer_load_dwordx4 {v(SL+4*q,4)}, v{vT16}, {WS}, s{sr} offen sc1" for q in range(4))
    if CFG.get('pad',3)==4: pads(p)
    if ORD==1: p.extend(ar)
    if ORD in(1,2): weights(p)
    else: p(ldst(sT)); wflag(p)
    if CFG.get('pad',3)==3: pads(p)
    bar(p)
    stamp(p,'p ktable done')
    E=24
    for i in range(15): p(f"ds_read_b32 v{E+i}, v{vIDX+i}")
    p(f"""v_lshrrev_b32 v13, 2, v{vLANE}
    v_mul_u32_u24 v13, 4160, v13
    v_and_b32 v14, 3, v{vLANE}
    v_lshl_add_u32 v13, v14, 2, v13
    v_add_u32 v13, {KC}, v13
    v_add_u32 v14, {KC}, v{vT16}
    ds_write_b32 v13, v12""")
    def xbar():
        c=f"v_xor_b32 v{tB}, s{sTAG}, v{SL+1}\n"+'\n'.join(f"v_bitop3_b32 v{tB}, v{tB}, v{SL+1+2*i}, s{sTAG} bitop3:0xf6" for i in range(1,8))+f"\nv_cmp_ne_u32 vcc, 0, v{tB}"
        retry(p,ldst,c,"s_cbranch_vccnz",name='bar0')
        stamp(p,'p bar0')
        for q in range(4): p(f"s_add_u32 s{sT}, s{sX2L}, {X0+q*0x10000}\nbuffer_load_dwordx2 {v(LAND+2*q,2)}, v{vXL}, {WS}, s{sT} offen sc1")
        for i in range(8): p(f"v_mov_b32 v{LAND+8+i}, v{SL+2*i}")
    x=P(); q=0
    for ch in range(2):
        sel=sPL if ch==0 else sPH
        for j0 in range(8):
            d=(40,44,48,52,100,104,108,112)[q%8]; q+=1
            for kk in range(4):
                i=7-j0+2*kk
                x(f"v_perm_b32 v{d+kk}, v{E+i+1}, v{E+i}, s{sel}")
            x(f"ds_write_b128 v14, {v(d,4)} offset:{ch*33280+j0*4160+16}")
    xc=5*CFG.get('exp',8)
    if ORD in(1,2):
        e1=5*CFG.get('e1',0); p.extend(x[:e1]); p(ldst(sT)); wflag(p); p.extend(x[e1:xc])
    else: p.extend(x[:xc])
    xbar()
    p(f"""s_lshl_b32 s{sWF}, s{sCB}, 9
    s_add_u32 s{sWF}, s{sWF}, {WF}
    s_lshl_b32 s{sT}, s{sWV}, 6
    v_bfe_u32 v{vR}, v{vL8}, 1, 6
    v_add_u32 v{vR}, s{sT}, v{vR}""")
    ldw=lambda sr:f"buffer_load_dword v{tB+1}, v{vR}, {WS}, s{sWF} offen sc1"
    p(ldw(0)); p.extend(x[xc:])
    wl=P()
    retry(wl,ldw,f"v_cmp_ne_u32 s[{sC+2}:{sC+3}], s{sTAG}, v{tB+1}","s_cbranch_scc1",f"s_cmp_lg_u64 s[{sC+2}:{sC+3}], 0",name='wbar')
    stamp(wl,'p wbar')
    def touch(l,base,q,n):
        if not CFG.get('touch',0): return
        l(f"""s_and_b32 s{sC}, s{sRB}, 3
        s_mul_i32 s{sC}, s{sC}, {q}
        s_add_u32 s{sC}, s{sC}, s{base}
        v_min_u32 v{tB+1}, {(n-1)*16}, v{vL16}
        v_lshlrev_b32 v{tB+1}, 3, v{tB+1}
        buffer_load_dword v250, v{tB+1}, {WS}, s{sC} offen sc1
        s_add_u32 s{sC}, s{sC}, {q//2}
        buffer_load_dword v251, v{tB+1}, {WS}, s{sC} offen sc1""")
    touch(wl,sW1,12288,48)
    wl.extend(w1loads()); cut=0
    global W2PRE
    W2PRE=P()
    W2PRE(f"""s_mul_i32 s{sC}, s{sWV}, 44
    v_lshrrev_b32 v{vR}, 1, v{vL8}
    v_min_u32 v{vR}, 40, v{vR}
    v_add_u32 v{vR}, s{sC}, v{vR}""")
    ldw2=lambda sr:f"buffer_load_dword v{tB+1}, v{vR}, {WS}, s{sWF} offen offset:256 sc1"
    W2PRE(ldw2(0)); done(W2PRE,'w2f')
    global W2CK
    W2CK=P()
    retry(W2CK,ldw2,f"v_cmp_ne_u32 s[{sC+2}:{sC+3}], s{sTAG}, v{tB+1}","s_cbranch_scc1",f"s_cmp_lg_u64 s[{sC+2}:{sC+3}], 0",name='wbar2')
    touch(W2CK,sW2,11264,44)
    stamp(p,'p expand done')
    return p,P(wl[cut:])
def ldst0(q): return lambda sr:f"s_mov_b32 s{sr}, {ST0+q*4096}\nbuffer_load_dwordx4 {v(LAND+8+4*(q%3),4)}, v{vT16}, {WS}, s{sr} offen sc1"
def w1loads():
    l=P()
    for f in range(48):
        if f%4==0: l(f"s_add_u32 s{sC}, s{sW1}, {f*1024}",'glue')
        l(f"buffer_load_dwordx4 {W1(f//3,f%3)}, v{vL16}, {WS}, s{sC} offen offset:{(f%4)*1024} sc1")
    return l
def w2loads():
    l=P()
    for f in range(44):
        if f%4==0: l(f"s_add_u32 s{sC}, s{sW2}, {f*1024}",'glue')
        l(f"buffer_load_dwordx4 {W2(f//4,f%4)}, v{vL16}, {WS}, s{sC} offen offset:{(f%4)*1024} sc1")
    return l
def sched(out,seq,pool,late,ld,req,dist):
    where={}; free=list(pool); n=len(seq); uses={}; got=set()
    for i,x in enumerate(seq):
        uses.setdefault(x[0],[]).append(i); uses.setdefault(x[1],[]).append(i)
    def nxt(k,i):
        for u in uses[k]:
            if u>=i: return u
        return 10**9
    cnt=[0]
    def fetch(i,limit,horizon):
        c=0
        for j in range(i,min(n,horizon+1)):
            for k in seq[j][:2]:
                if k in where: continue
                if c>=limit: return
                if free: r=free.pop(0)
                else:
                    vic=max(where,key=lambda q:nxt(q,i))
                    if nxt(vic,i)<=j: return
                    r=where.pop(vic)
                t=req(k)
                if t and t not in got: need(out,t); got.add(t)
                where[k]=r; out(ld(k,r)); c+=1; cnt[0]+=1
    fetch(0,6,dist)
    for i,(ka,kb,acc,first,marks) in enumerate(seq):
        for mk in marks: out.append(mk)
        if i==late[0]:
            if late[2]: need(out,late[2])
            free.extend(late[1])
        fetch(i,99,i)
        out(f"v_mfma_f32_16x16x32_bf16 {v(acc,4)}, {v(where[ka],4)}, {v(where[kb],4)}, {'0' if first else v(acc,4)}")
        for k in (ka,kb):
            if k in where and nxt(k,i+1)>=10**9: free.append(where.pop(k))
        fetch(i+1,1,i+1+dist)
    return cnt[0]
def conv_main(m,L):
    seq=[]; seen=set()
    def add(aa,b,r,marks): seq.append((('A',aa,r),('B',b,r),TACC[aa+b],(aa+b) not in seen,marks)); seen.add(aa+b)
    for q in range(4):
        mk=[Mark('pos',f'F{q}{L}')]
        for r in range(4):
            for aa,b in ((0,2*q),(0,2*q+1),(1,2*q)): add(aa,b,r,mk); mk=[]
        mk=[Mark('pos',f'K{q}{L}')]
        if q==3: break
        for r in ((3,2,1,0)):
            add(1,2*q+1,r,mk); mk=[]
            for aa in range(2,8-2*q):
                add(aa,2*q,r,[])
                if aa+2*q+1<8: add(aa,2*q+1,r,[])
    def ld(k,r):
        if k[0]=='A': return f"ds_read_b128 {v(r,4)}, v{vCA} offset:{512*k[1]+64*k[2]}"
        return f"ds_read_b128 {v(r,4)}, v{vCB} offset:{512*k[1]+64*(3-k[2])}"
    stamp(m,f'm convpre{L}'); need(m,'G2E30') if L else None; need(m,f'N0{L}')
    if L: need(m,'addrC1')
    n=sched(m,seq,POOL,(0,POOL2,None),ld,lambda k:f'N{k[1]//2}{L}' if k[0]=='B' else None,CFG['dist'])
    pos(m,f'K3{L}'); stamp(m,f'm convend{L}'); print('conv reads',n,file=sys.stderr)
def colsum_main(m):
    m(f"v_mov_b32 v{ONES}, 0x3f803f80\nv_mov_b32 v{ONES+1}, 0x3f803f80\nv_mov_b32 v{ONES+2}, 0x3f803f80\nv_mov_b32 v{ONES+3}, 0x3f803f80")
    need(m,'W1')
    for ks in range(16):
        for t in range(3): m(f"v_mfma_f32_16x16x32_bf16 {v(vCS+4*t,4)}, {W1(ks,t)}, {v(ONES,4)}, {'0' if ks==0 else v(vCS+4*t,4)}")
    pos(m,'CSend')
def g1_main(m,L):
    def ldf(s,h):
        j,ks=divmod(s,16)
        if ks==0 and h==0: need(m,f'S{j}{L}')
        m(f"ds_read_b64_tr_b16 {v(F[s%4]+2*h,2)}, v{vGF} offset:{j*16384+(ks%4)*1024+h*512}")
        if ks%4==3 and h==1: m(f"v_xor_b32 v{vGF}, {(1 if (ks//4)%2==0 else 3)*4096}, v{vGF}")
    for s in range(3): ldf(s,0); ldf(s,1)
    for s in range(64):
        j,ks=divmod(s,16); acc=ACC[j%2]
        if ks==0:
            pos(m,f'G1_{j}{L}'); stamp(m,f'm G1_{j}{L}')
            if j>=2: need(m,f'G1E{j-2}{L}')
        for t in range(3):
            m(f"v_mfma_f32_16x16x32_bf16 {v(acc+4*t,4)}, {W1(ks,t)}, {v(F[s%4],4)}, {'0' if ks==0 else v(acc+4*t,4)}")
            if t<2 and s+3<64: ldf(s+3,t)
        if ks<4: m(f"v_mfma_f32_16x16x32_bf16 {v(acc+12,4)}, {v(F[s%4],4)}, {v(F[s%4],4)}, {'0' if ks==0 else v(acc+12,4)}")
    pos(m,f'G1_4{L}')
def g2_main(m,L):
    for j in range(4):
        acc=ACC[j%2]; b=HBUF[j%2]
        pos(m,f'G2_{j}{L}'); stamp(m,f'm G2_{j}{L}')
        need(m,f'G1E{j+2}{L}' if j<2 else f'G2E{j-2}{L}')
        if L==0 and j==0: need(m,'W2')
        for ks in range(11):
            if ks==0: need(m,f'Ha{j}{L}')
            if ks==6: need(m,f'Hb{j}{L}')
            for t in range(4):
                c='0' if ks==0 else v(acc+4*t,4)
                if L==0: m(f"v_mfma_f32_16x16x32_bf16 {v(acc+4*t,4)}, {v(b+4*ks,4)}, {W2(ks,t)}, {c}")
                else: m(f"v_mfma_f32_16x16x32_bf16 {v(acc+4*t,4)}, {W2(ks,t)}, {v(b+4*ks,4)}, {c}")
    pos(m,f'G2_4{L}')
def ldx2(q):
    s_=q%2
    return lambda sr:f"""s_add_u32 s{sr}, s{sX2L}, {X2+q*0x10000}
    buffer_load_dwordx2 {v(LAND+2*s_,2)}, v{vXL}, {WS}, s{sr} offen sc1
    s_mov_b32 s{sr}, {STA+q*128*STS}
    buffer_load_dwordx4 {v(LAND+4+8*s_,4)}, v{vSL}, {WS}, s{sr} offen sc1
    buffer_load_dwordx4 {v(LAND+8+8*s_,4)}, v{vSL}, {WS}, s{sr} offen offset:16 sc1 ; use Y{q}"""
def N(A,q,L):
    BASE=BASES[q%2]
    if L==0:
        xr=LAND+2*q; sb=LAND+8+2*q; ma,ra,mb,rb=tA+4,tA+5,tA+6,tA+7; u=[tA,tA+1,tA+2,tA+3]
        A(f"""v_and_b32 v{ra}, s{sHI}, v{sb}
        v_and_b32 v{rb}, s{sHI}, v{sb+1}
        v_rcp_f32 v{ra}, v{ra}
        v_rcp_f32 v{rb}, v{rb}
        v_lshlrev_b32 v{ma}, 16, v{sb}
        v_lshlrev_b32 v{mb}, 16, v{sb+1}""")
    else:
        xr=LAND+2*(q%2); sb=LAND+4+8*(q%2); ma,ra,mb,rb=sb,sb+1,sb+4,sb+5; u=[sb+2,sb+3,sb+6,sb+7]
        retry(A,ldx2(q),f"v_min_f32 v{sb+3}, v{sb+2}, v{sb+6}\nv_cmp_eq_u32 s[{sCK2}:{sCK2+1}], -1, v{xr}\nv_cmp_neq_f32 s[{sCK}:{sCK+1}], s{s8F}, v{sb+3}","s_cbranch_scc1",f"s_or_b64 s[{sCK}:{sCK+1}], s[{sCK}:{sCK+1}], s[{sCK2}:{sCK2+1}]",name=f'N{q}{L}')
        A(f"""v_mul_f32 v{ma}, 0x3b000000, v{ma}
        v_mul_f32 v{mb}, 0x3b000000, v{mb}
        v_fma_f32 v{u[0]}, v{ma}, v{ma}, -s{sEPS}
        v_fma_f32 v{u[1]}, v{mb}, v{mb}, -s{sEPS}
        v_fmamk_f32 v{ra}, v{ra}, 0xbb000000, v{u[0]}
        v_fmamk_f32 v{rb}, v{rb}, 0xbb000000, v{u[1]}
        v_max_f32_e64 v{ra}, -v{ra}, s{sEPS}
        v_max_f32_e64 v{rb}, -v{rb}, s{sEPS}
        v_rsq_f32 v{ra}, v{ra}
        v_rsq_f32 v{rb}, v{rb}""")
    A(f"v_lshlrev_b32 v{BASE}, 16, v{xr}\nv_and_b32 v{BASE+1}, s{sHI}, v{xr}\nv_lshlrev_b32 v{BASE+2}, 16, v{xr+1}\nv_and_b32 v{BASE+3}, s{sHI}, v{xr+1}")
    sel=[(ma,ra,'[0,0,2,2]'),(mb,rb,'[0,0,2,2]'),(ma,ra,'[1,1,3,3]'),(mb,rb,'[1,1,3,3]')]
    for e,(m_,r_,qp) in enumerate(sel): A(f"v_subrev_f32_dpp v{u[e]}, v{m_}, v{BASE+e} quad_perm:{qp} row_mask:0xf bank_mask:0xf")
    for e,(m_,r_,qp) in enumerate(sel): A(f"v_mul_f32_dpp v{u[e]}, v{r_}, v{u[e]} quad_perm:{qp} row_mask:0xf bank_mask:0xf")
    A(f"v_cvt_pk_bf16_f32 v{xr}, v{u[0]}, v{u[1]}\nv_cvt_pk_bf16_f32 v{xr+1}, v{u[2]}, v{u[3]}\nds_write_b64 v{vNU}, {v(xr,2)} offset:{q*1024}")
    for e in range(4): A(f"v_fmac_f32 v{BASE+e}, v{vD}, v{u[e]}")
    done(A,f'Nuse{q}{L}')
    bar(A,f'N{q}{L}'); done(A,f'N{q}{L}'); stamp(A,f'N{q}{L}')
def E(A,q,L):
    t=tA; o=(q%2)*2048; BASE=BASES[q%2]
    hard_at(A,f'K{q}{L}')
    A(f"ds_write_b128 v{vW}, {v(TACC[2*q],4)} offset:{o}\nds_write_b128 v{vW}, {v(TACC[2*q+1],4)} offset:{o+1024}")
    done(A,f'Ew{q}{L}'); gap(A,4)
    if q==(2 if CFG.get('pzb','c')=='c' else 0) and L==0: after(A,'pzb'); A(".!vmtag pz")
    bar(A,f'E{q}{L}')
    A(f"ds_read_b128 {v(t,4)}, v{vER} offset:{o}\nds_read_b128 {v(t+4,4)}, v{vER} offset:{o+4096}"); gap(A,5)
    for e in range(4): A(f"v_add_f32 v{BASE+e}, v{BASE+e}, v{t+e}")
    for e in range(4): A(f"v_add_f32 v{BASE+e}, v{BASE+e}, v{t+4+e}")
    A(f"""v_cvt_pk_bf16_f32 v{t+8}, v{BASE}, v{BASE+1}
    v_cvt_pk_bf16_f32 v{t+9}, v{BASE+2}, v{BASE+3}
    v_min_u32 v{t+8}, -2, v{t+8}""")
    glue(A,f"s_add_u32 s{sA}, s{sXS}, {X1[L]+q*0x80000}\nbuffer_store_dwordx2 {v(t+8,2)}, v{vXS}, {WS}, s{sA} offen sc1 ; pub X{q}{L}")
    done(A,f'E{q}{L}'); stamp(A,f'E{q}{L}')
def ldx1(j,L):
    def f(sr):
        return '\n'.join(f"s_add_u32 s{sr}, s{sXL}, {X1[L]+j*0x80000+i*4096}\nbuffer_load_dwordx4 {v(STG[j]+4*i,4)}, v{vT16}, {WS}, s{sr} offen sc1 ; use X{j}{L}" for i in range(4))
    return f
def stage(B,j,L):
    b=STG[j]
    retry(B,ldx1(j,L),f"""v_max3_u32 v{tB}, v{b}, v{b+2}, v{b+4}
    v_max3_u32 v{tB}, v{tB}, v{b+6}, v{b+8}
    v_max3_u32 v{tB}, v{tB}, v{b+10}, v{b+12}
    v_max_u32 v{tB}, v{tB}, v{b+14}
    v_cmp_eq_u32 vcc, -1, v{tB}""","s_cbranch_vccnz",name=f'S{j}{L}')
    for i in range(4): B(f"ds_write_b128 v{vT16}, {v(b+4*i,4)} offset:{j*16384+i*4096}")
    gap(B,4); bar(B,f'S{j}{L}'); done(B,f'S{j}{L}'); stamp(B,f'S{j}{L}')
def G1E(A,j,L):
    t=tA; acc=ACC[j%2]
    hard_at(A,f'G1_{j+1}{L}')
    HT=CFG.get('htag',1); sg=0xbb000000
    fb=lambda k:([0,1,1,0,0,1][k//2] if HT else 0)^L
    A(f"""v_mul_f32 v{t}, {hex(sg)}, v{acc+8}
    v_mul_f32 v{t+1}, {hex(sg)}, v{acc+8}
    v_cndmask_b32 v{t+8}, v{acc+12}, v{acc+13}, s[{sM1}:{sM1+1}]
    v_permlane32_swap_b32 v{t}, v{t+1}
    v_cndmask_b32 v{t+8}, v{t+8}, v{acc+14}, s[{sM2}:{sM2+1}]
    v_mov_b32 v{t}, v{t+1}
    v_cndmask_b32 v{t+8}, v{t+8}, v{acc+15}, s[{sM3}:{sM3+1}]
    s_add_u32 s{sA}, s{sHS}, {j*4*11264}
    v_permlane16_swap_b32 v{t}, v{t+1}""")
    for k in range(12):
        if not fb(k): A(f"v_fmac_f32 v{acc+k}, v{t+1}, v{vCS+k}")
        else: A(f"v_fma_f32 v{acc+k}, -v{t+1}, v{vCS+k}, -v{acc+k}")
        if k%2:
            A(f"v_cvt_pk_bf16_f32 v{t+2+k//2}, v{acc+k-1}, v{acc+k}")
            A(f"v_pk_max_i16 v{t+2+k//2}, v{t+2+k//2}, 0" if not fb(k) else f"v_pk_max_u16 v{t+2+k//2}, v{t+2+k//2}, s{sNEG}")
        if k==7: A(f"buffer_store_dwordx4 {v(t+2,4)}, v{vL16}, {WS}, s{sA} offen sc1\ns_add_u32 s{sA}, s{sHS2}, {j*4*11264}")
    done(A,f'cs{j}{L}')
    A(f"""buffer_store_dwordx2 {v(t+6,2)}, v{vHS}, {WS}, s{sA} offen sc1 ; pub H{j}{L}
    ds_write_b32 v{vSQ}, v{t+8} offset:{j*256}
    ds_write_b32 v{vSQ}, v{t+1} offset:{1024+j*256}""")
    done(A,f'G1E{j}{L}'); stamp(A,f'G1E{j}{L}')
def rcomp(A,L):
    t=tA
    A(f"""s_lshl_b32 s{sA}, s{sWV}, 6
    s_add_u32 s{sA}, s{sA}, {SQ}
    v_bfe_u32 v{t}, v{vL16}, 6, 2
    v_and_b32 v{t+1}, 48, v{vL16}
    v_lshlrev_b32 v{t}, 8, v{t}
    v_add3_u32 v{t}, v{t}, v{t+1}, s{sA}""")
    bar(A)
    A(f"ds_read_b128 {v(t+2,4)}, v{t}\nds_read_b32 v{t+1}, v{t} offset:1024"); gap(A,4)
    A(f"""v_add_f32 v{t+2}, v{t+2}, v{t+3}
    v_add_f32 v{t+4}, v{t+4}, v{t+5}
    v_mul_f32 v{t+1}, v{t+1}, v{t+1}
    v_add_f32 v{t+2}, v{t+2}, v{t+4}
    v_fmamk_f32 v{t+1}, v{t+2}, 0xbb000000, v{t+1}
    v_min_f32 v{t+1}, 0, v{t+1}
    v_sub_f32 v{t+1}, s{sEPS}, v{t+1}
    v_rsq_f32 v{vR}, v{t+1}""")
    if L: A(f"v_sub_f32 v{vR}, 0, v{vR}")
def ldh(j,ks,sr,setup,L=''):
    b=HBUF[j%2]; x=''
    if setup: x=f"s_add_u32 s{sr}, s{sHL}, {j*4*11264+(ks//4)*4096}\n"
    if ks<8: return x+f"buffer_load_dwordx4 {v(b+4*ks,4)}, v{vL16}, {WS}, s{sr} offen offset:{(ks%4)*1024} sc1 ; use H{j}{L}"
    return x+'\n'.join(f"buffer_load_dwordx2 {v(b+4*ks+2*h,2)}, v{vL8}, {WS}, s{sr} offen offset:{(ks%4)*1024+h*512} sc1" for h in range(2))
def hcheck(B,j,half,L):
    b=HBUF[j%2]; kss=range(0,6) if half==0 else range(6,11)
    rs=[]
    for ks in kss: rs+= [b+4*ks] if ks<8 else [b+4*ks,b+4*ks+2]
    op3=(lambda d,x,y,z:f"v_or3_b32 v{d}, v{x}, v{y}, v{z}") if L==0 else (lambda d,x,y,z:f"v_bitop3_b32 v{d}, v{x}, v{y}, v{z} bitop3:0x80")
    c=[op3(tB,rs[0],rs[1],rs[2])]; rs=rs[3:]
    while len(rs)>=2: c.append(op3(tB,tB,rs[0],rs[1])); rs=rs[2:]
    if rs: c.append(f"v_{'or' if L==0 else 'and'}_b32 v{tB}, v{tB}, v{rs[0]}")
    c.append(f"v_cmp_{'gt' if L==0 else 'le'}_i32 vcc, 0, v{tB}")
    if L==0 and CFG.get('htag',1):
        rs=[(b+4*ks+d,([0,1,1,0] if ks<8 else [0,1,0,1])[d]) for ks in kss for d in range(4)]
        tt=lambda m,e:(m^0xff) if e else m
        c=[f"v_bitop3_b32 v{tB}, v{rs[0][0]}, v{rs[1][0]}, v{rs[2][0]} bitop3:{hex(tt(0xf0,rs[0][1])|tt(0xcc,rs[1][1])|tt(0xaa,rs[2][1]))}"]; rs=rs[3:]
        while len(rs)>=2: c.append(f"v_bitop3_b32 v{tB}, v{tB}, v{rs[0][0]}, v{rs[1][0]} bitop3:{hex(0xf0|tt(0xcc,rs[0][1])|tt(0xaa,rs[1][1]))}"); rs=rs[2:]
        assert len(rs)==1
        c.append(f"v_bitop3_b32 v{tB}, v{tB}, v{rs[0][0]}, s{sNEG} bitop3:{hex((0xf0|tt(0xcc,rs[0][1]))&0xaa)}")
        c.append(f"v_cmp_ne_u32 vcc, 0, v{tB}")
    retry(B,lambda sr:'\n'.join(ldh(j,ks,sr,ks%4==0 or ks==kss[0]) for ks in kss),'\n'.join(c),"s_cbranch_vccnz",name=f"H{'ab'[half]}{j}{L}")
    done(B,f"H{'ab'[half]}{j}{L}")
    if half==0: stamp(B,f'Ha{j}{L}')
def G2E(A,j,L):
    t=tA; acc=ACC[j%2]
    hard_at(A,f'G2_{j+1}{L}')
    for tt in range(4): A(f"ds_write_b128 v{vW}, {v(acc+4*tt,4)} offset:{tt*1024}")
    if j==0: after(A,f'addrG{L}') if L else None
    A(f"{'ds_read_b64' if L==0 else 'ds_read_b64_tr_b16'} {v(t,2)}, v{vRES} offset:{j*16384}")
    if L: A(f"v_bfe_u32 v{t+8}, v{vL16}, 2, 4\nds_bpermute_b32 v{t+8}, v{t+8}, v{vR} offset:{16*j}")
    else:
        for e in range(4): A(f"v_readlane_b32 s{sA+2+e}, v{vR}, {4*j+e}")
    gap(A,2); bar(A,f'G{j}{L}')
    for sw in range(4): A(f"ds_read_b128 {v(acc+4*sw,4)}, v{vRR} offset:{sw*4096}")
    A(f"v_lshlrev_b32 v{t+2}, 16, v{t}\nv_and_b32 v{t+3}, s{sHI}, v{t}\nv_lshlrev_b32 v{t+4}, 16, v{t+1}\nv_and_b32 v{t+5}, s{sHI}, v{t+1}")
    gap(A,3)
    for e in range(4): A(f"v_add_f32 v{acc+e}, v{acc+e}, v{acc+4+e}")
    for e in range(4): A(f"v_add_f32 v{acc+8+e}, v{acc+8+e}, v{acc+12+e}")
    if not(L and j==3): A("s_barrier")
    for e in range(4): A(f"v_add_f32 v{acc+e}, v{acc+e}, v{acc+8+e}")
    for e in range(4): A(f"v_fmac_f32 v{t+2+e}, {('s%d'%(sA+2+e)) if L==0 else 'v%d'%(t+8)}, v{acc+e}")
    A(f"v_cvt_pk_bf16_f32 v{t+6}, v{t+2}, v{t+3}\nv_cvt_pk_bf16_f32 v{t+7}, v{t+4}, v{t+5}")
    if L==0:
        x=t+2; q=acc
        A(f"""v_min_u32 v{t+6}, -2, v{t+6}
        s_add_u32 s{sA}, s{sX2S}, {j*0x10000}
        buffer_store_dwordx2 {v(t+6,2)}, v{vL8}, {WS}, s{sA} offen sc1
        v_mul_f32 v{q}, v{x}, v{x}
        v_mul_f32 v{q+1}, v{x+1}, v{x+1}
        v_mul_f32 v{q+2}, v{x+2}, v{x+2}
        v_mul_f32 v{q+3}, v{x+3}, v{x+3}
        v_permlane32_swap_b32 v{x}, v{x+2}
        v_permlane32_swap_b32 v{x+1}, v{x+3}
        v_permlane32_swap_b32 v{q}, v{q+2}
        v_permlane32_swap_b32 v{q+1}, v{q+3}
        v_add_f32 v{x}, v{x}, v{x+2}
        v_add_f32 v{x+1}, v{x+1}, v{x+3}
        v_add_f32 v{q}, v{q}, v{q+2}
        v_add_f32 v{q+1}, v{q+1}, v{q+3}
        v_permlane16_swap_b32 v{x}, v{x+1}
        v_permlane16_swap_b32 v{q}, v{q+1}
        v_add_f32 v{x}, v{x}, v{x+1}
        v_add_f32 v{q}, v{q}, v{q+1}
        s_add_u32 s{sA}, s{sSTA}, {j*128*STS}
        v_add_f32_dpp v{x}, v{x}, v{x} row_ror:8 row_mask:0xf bank_mask:0xf
        v_add_f32_dpp v{x}, v{q}, v{q} row_ror:8 row_mask:0xf bank_mask:0xc
        v_add_f32_dpp v{x}, v{x}, v{x} row_half_mirror row_mask:0xf bank_mask:0xf
        v_add_f32_dpp v{x}, v{x}, v{x} quad_perm:[2,3,0,1] row_mask:0xf bank_mask:0xf
        v_add_f32_dpp v{x}, v{x}, v{x} quad_perm:[1,0,3,2] row_mask:0xf bank_mask:0xf
        v_cndmask_b32 v{x}, v{x}, 1.0, s[{sMC}:{sMC+1}]
        buffer_atomic_add_f32 v{x}, v{vST}, {WS}, s{sA} offen sc1 ; pub Y{j}""")
    else:
        A(f"s_add_u32 s{sA}, s{sOB}, {j*0x80000}\nbuffer_store_dwordx2 {v(t+6,2)}, v{vST}, s[{sOUT}:{sOUT+3}], s{sA} offen")
    done(A,f'G2E{j}{L}'); stamp(A,f'G2E{j}{L}')
def glue(l,text):
    for x in text.strip().split('\n'):
        x=x.strip(); l(x,'glue' if x.startswith('s_') else None)
def atc(l,c,L): at(l,c[0]+str(L),c[1])
p,w1rest=phaseP()
M=P(); A=P(); B=P(); C=P()
for L in range(2):
    conv_main(M,L)
    if L==0: colsum_main(M)
    g1_main(M,L); g2_main(M,L)
W=CFG['W']
def w_(l,key,L): nm,a_,b_=W[key+str(L)] if key+str(L) in W else W[key]; win(l,nm if nm[-1]=='!' else nm+str(L),a_,b_)
D=P(); B2=P()
for L in range(2):
    if L==0:
        win(A,'F00',0,0); N(A,0,0); w_(A,'N1',0); N(A,1,0)
    for q in range(4):
        w_(A,f'E{q}',L); E(A,q,L)
        if L==0 and q<2:
            w_(A,f'N{q+2}',0)
            N(A,q+2,0)
    w_(A,'cs',L)
    if L==0: hard_at(A,'CSend')
    A(f"s_mul_i32 s{sA}, s{sWV}, 192\ns_add_u32 s{sA}, s{sA}, {CSL}\nv_lshrrev_b32 v{tA}, 8, v{vL16}\nv_lshl_add_u32 v{tA}, v{tA}, 4, s{sA}")
    for t in range(3): A(f"ds_write_b128 v{tA}, {v(vCS+4*t,4)} offset:{t*64}" if L==0 else f"ds_read_b128 {v(vCS+4*t,4)}, v{tA} offset:{t*64}")
    for j in range(4):
        w_(A,f'G1E{j}',L)
        if j==0: after(A,f'S1{L}')
        G1E(A,j,L)
    w_(A,'rc',L); rcomp(A,L)
    for j in range(4): w_(A,f'G2E{j}',L); G2E(A,j,L)
for q in range(4):
    w_(D,f'N{q}',1); after(D,f'Nld{q}1')
    if q>=2: after(D,f'E{q-2}1')
    N(D,q,1)
for L in range(2):
    ev=[]
    if L==0:
        w_(B,'nld3',0); after(B,'N00')
        B(f"""s_add_u32 s{sEP}, s{sEP}, 1
        v_mov_b32 v{tB}, s{sEP}
        s_or_b32 s{sB}, s2, s{sWV}""")
        B(f"s_cmp_lg_u32 s{sB}, 0",'glue'); B("s_cbranch_scc1 Lnoep",'glue'); B(f"s_mov_b32 s{sB}, {EP}",'glue')
        B(f"buffer_store_dword v{tB}, off, {WS}, s{sB} sc1 ; skip",'glue'); B("Lnoep:")
    else:
        for q in (2,3): w_(B,f'nld{q}',1); after(B,f'Nuse{q-2}1'); glue(B,ldx2(q)(sB)); done(B,f'Nld{q}1')
    for j in range(4):
        w_(B,f'xld{j}',L); after(B,[f'Ew1{L}',f'Nuse3{L}',f'Ew3{L}',f'E3{L}'][j])
        if j==3 and L==0: hard_at(B,'CSend')
        glue(B,ldx1(j,L)(sB)); done(B,f'xld{j}{L}')
        w_(B2,f'S{j}',L); after(B2,f'xld{j}{L}'); stage(B2,j,L)
    for j in range(4):
        for part,kss in ((('a',range(0,6)),('b',range(6,11))) if j!=1 else (('a',range(0,4)),('b',range(4,8)),('c',range(8,11)))):
            w_(B,f'hld{j}{part}',L)
            if j==0:
                after(B,f'S2{L}' if part=='a' else f'S3{L}')
                if L: after(B,'addrG1')
            if j==1:
                if part=='a': after(B,f'S2{L}'); after(B,'PZ')
                if part=='b': hard_at(B,f'G2_0{L}')
                if part=='c': after(B,f'cs3{L}')
            for ks in kss:
                if j>=2: hard_at(B,f'G2_{j-2}{L}',4*ks+4)
                glue(B,ldh(j,ks,sB,ks%4==0 or ks==kss[0],L))
                if ks==5: done(B,f'hlda{j}{L}')
            if kss[-1]==10: done(B,f'hldb{j}{L}')
        for half in range(2):
            win(B2,f'G2_{j}{L}',24*half-(CFG.get('hck0',10) if L==0 and CFG.get('htag',1) else CFG['hck']),24*half-1); after(B2,f"hld{'ab'[half]}{j}{L}"); hcheck(B2,j,half,L)
    if L==0:
        for q in (0,1):
            w_(B,f'nld{q}',1); hard_at(B,'G2_30'); after(B,'addrN1'); glue(B,ldx2(q)(sB)); done(B,f'Nld{q}1')
w_(C,'w1',0)
nv=[n for n,i in enumerate(w1rest) if i.kind=='vmem']
nv=nv[-48:]
C.extend(w1rest[:nv[15]+1]); C.extend(W2PRE); C.extend(w1rest[nv[15]+1:nv[39]+1]); C.extend(W2CK); C.extend(w1rest[nv[39]+1:]); done(C,'W1')
w_(C,'w2',0); after(C,'pzb'); C.extend(w2loads()); done(C,'W2')
Z=P(); sZ=43
w_(Z,'pzb',0)
for j in range(0 if CFG.get('htag',1) else 4):
    Z(f"s_add_u32 s{sZ}, s{sHS}, {j*4*11264}",'glue'); Z(f"buffer_store_dwordx4 {v(vPZ,4)}, v{vL16}, {WS}, s{sZ} offen sc1",'pz')
    Z(f"s_add_u32 s{sZ}, s{sHS2}, {j*4*11264}",'glue'); Z(f"buffer_store_dwordx2 {v(vPZ,2)}, v{vHS}, {WS}, s{sZ} offen sc1",'pz')
for i in range(2): Z(f"s_add_u32 s{sZ}, s{sPZ}, {X2+i*4096}",'glue'); Z(f"buffer_store_dwordx4 {v(vPZ,4)}, v{vT16}, {WS}, s{sZ} offen sc1",'pz')
Z(f"""v_mov_b32 v248, 0
v_lshrrev_b32 v249, 9, v{vT16}
v_lshlrev_b32 v249, 25, v249
v_bfe_u32 v250, v{vT16}, 2, 6
v_add_u32 v249, v249, v250
v_bfe_u32 v250, v{vT16}, 8, 1
v_mul_u32_u24 v250, {STS}, v250
v_add_u32 v249, v249, v250
s_mul_i32 s{sZ}, s2, {2*STS}
s_add_u32 s{sZ}, s{sZ}, {STA}""")
Z(f"buffer_store_dword v248, v249, {WS}, s{sZ} offen sc1",'pz')
if CFG.get('pzb','c')=='k': Z=P(); w_(Z,'pzb',0); Z("s_nop 0")
if CFG.get('tlb',0)==1:
    Z(f"v_lshlrev_b32 v249, 14, v{vL16}\nv_lshlrev_b32 v250, 11, v{vL16}\ns_lshl_b32 s{sZ}, s2, 7")
    Z(f"buffer_load_dword v249, v249, {WS}, s{sZ} offen sc1",'pz'); Z(f"buffer_load_dword v250, v250, s[{sOUT}:{sOUT+3}], s{sZ} offen",'pz')
if CFG.get('tlb',0)==2:
    Z(f"v_lshlrev_b32 v250, 1, v{vT16}")
    Z(f"buffer_load_dword v250, v250, s[{sOUT}:{sOUT+3}], s{sPZ} offen",'pz')
done(Z,'pzb')
w_(C,'pz',0); after(C,'S20')
C(f"v_mov_b32 v100, -1\nv_mov_b32 v101, -1\nv_mov_b32 v102, -1\nv_mov_b32 v103, -1")
glue(C,f"s_add_u32 s{sC}, s{sPZ}, {X1[1]}\nbuffer_store_dwordx4 v[100:103], v{vT16}, {WS}, s{sC} offen sc1\ns_add_u32 s{sC}, s{sPZ}, {X1[1]+4096}\nbuffer_store_dwordx4 v[100:103], v{vT16}, {WS}, s{sC} offen sc1")
done(C,'PZ')
w_(C,'ca',0); hard_at(C,'G2_20',44); conv_addr(C,sC,92,93,94,1)
w_(C,'ga',1); after(C,'G2E30'); after(C,'E31'); g2_addr(C,sC,56,57,1)
Y=P()
for n_,(nm,a_) in enumerate(CFG.get('cpf',[])):
    win(Y,nm,a_,a_+4); r_=tB+1
    if nm[0] in 'FK' and nm[-1]=='0': r_=251
    else: after(Y,'W1')
    Y(f"v_and_b32 v{r_}, 48, v{vL16}\nv_lshl_add_u32 v{r_}, v{r_}, 3, s45\nglobal_load_dword v{r_}, v{r_}, s[58:59] sc1")
log=[]
body=plan(M,[A,D,B,B2,C,Z]+([Y] if len(Y) else []),log)
for x in log: print(x,file=sys.stderr)
p.extend(body)
stamp(p,'end')
if STAMP: p(f"v_lshrrev_b32 v12, 1, v{vL8}\nbuffer_store_dword v{vSTP}, v12, {WS}, s{sTS} offen")
if 'probe' in CFG:
    p(f"""s_sub_u32 s97, s97, s68
    s_min_u32 s97, s97, 6000
    s_mul_i32 s97, s97, 10
    s_add_u32 s97, s97, 4000
    s_mov_b32 s96, 0
    Lspin:
    s_memrealtime s[{sST}:{sST+1}]
    s_add_u32 s96, s96, 1
    s_cmp_gt_u32 s96, 1000000
    s_cbranch_scc1 Lend
    s_sub_u32 s{sST}, s{sST}, s68
    s_cmp_lt_u32 s{sST}, s97
    s_cbranch_scc1 Lspin""")
p("Lend:\ns_endpgm\nLbail:\ns_endpgm"); p.extend(stubs); p("Lcodeend:")
out=finalize(p,CFG.get('merge',14))
if CFG.get('al',1): print('align',align32(out),file=sys.stderr)
if CFG.get('pad',3):
    sz=sizes_of(out); off=CFG.get('koff',0x300); new=[]; pads=[]; started=False
    for i,n in zip(out,sz):
        if new and new[-1].text=='s_mov_b64 exec, -1': started=True
        if i.kind=='label' and i.text=='Lend:': started=False
        prevglue=bool(new) and (new[-1].mn.startswith(('s_cmp','s_or_b64','v_cmp')) or new[-1].kind=='branch')
        if started and off//4096>len(pads)+PG0[0] and i.kind!='label' and not prevglue:
            k=len(pads); pads.append(k); new.append(I(f'Lpad{k}:')); new.append(I(f's_cbranch_execz PADNEXT{k}')); new.append(I('s_nop 0')); off+=8
        if not started and not pads: PG0[0]=off//4096
        new.append(i); off+=n
    for i in new:
        if 'PADNEXT' in i.text:
            k=int(i.text.split('PADNEXT')[1]); i.text=f"s_cbranch_execz {'Lpad%d'%(k+4) if k+4<len(pads) else 'Lpadret'}"
    out=new; print('pads',len(pads),file=sys.stderr)
ref=open(f'cdna_kernels/{NAME}.s.ref').read().split('\n')
hdr=[l for l in ref if l.startswith(';') and '@launch' not in l and 'Override' not in l and 'Harness parses' not in l]
txt='\n'.join(hdr)+f"""
; Generated by my own script: one persistent kernel (prep | conv | ffn1 | ffn2 | conv | ffn1 | ffn2).
; cfg {" ".join(sys.argv[2:])}
; @launch grid=(256,1,1) block=(256,1,1) lds={LDSN}
.amdgcn_target "amdgcn-amd-amdhsa--gfx950"
.text
.globl {NAME}_kernel
.p2align 12
.p2align 8
.type {NAME}_kernel,@function
.set CODESZ, Lcodeend-{NAME}_kernel-64
{NAME}_kernel:
"""+'\n'.join(('' if i.kind=='label' else '  ')+i.text for i in out)+f"""
.section .rodata,"a"
.p2align 6
.amdhsa_kernel {NAME}_kernel
  .amdhsa_next_free_vgpr 512
  .amdhsa_next_free_sgpr 102
  .amdhsa_accum_offset 256
  .amdhsa_group_segment_fixed_size 0
  .amdhsa_kernarg_size 104
  .amdhsa_user_sgpr_count 2
  .amdhsa_user_sgpr_kernarg_segment_ptr 1
  .amdhsa_system_sgpr_workgroup_id_x 1
.end_amdhsa_kernel
"""
lines=[i.text.split(';')[0].strip() for i in out]
if 'Lpadret:' in lines:
    assert lines[lines.index('Lpadret:')+1]=='s_mov_b64 exec, -1'
    assert sum(l=='s_mov_b64 exec, -1' for l in lines[:lines.index('Lend:')])==1
    for k in range(4): assert f'Lpad{k}:' in lines
lp={l[:-1]:n for n,l in enumerate(lines) if l.endswith(':')}
endi=lp['Lend']
for n,l in enumerate(lines):
    if l.startswith(('s_cbranch','s_branch')):
        tg=l.split()[1]
        if lp[tg]<=n:
            if n<endi: assert (l.startswith('s_cbranch_execz') and tg=='Lpadret') or ('probe' in CFG and tg=='Lspin'),l
            elif tg.startswith('Lretry'): assert lines[lp[tg]+2].startswith(f's_sub_u32 s{sSPIN}, s{sSPIN}, 1') and lines[lp[tg]+3]=='s_cbranch_scc1 Lbail',l
            else: assert tg.startswith('Lback') or tg=='Lbail',l
assert sum(('s%d'%sSPIN) in i.wr for i in out if not i.text.startswith('s_sub_u32 s%d'%sSPIN))==1
open(sys.argv[1],'w').write(txt)
from collections import Counter
print(len(out),'instrs',Counter(i.kind for i in out),'nops',sum(i.mn=='s_nop' for i in out),'waits',sum(i.mn=='s_waitcnt' for i in out),file=sys.stderr)
```
